```python
import torch

def _softmax(x, axis=-1):
    return torch.softmax(x, dim=axis)

def _gelu(x):
    return torch.nn.functional.gelu(x, approximate='tanh')

def _silu(x):
    return torch.nn.functional.silu(x)

def _sigmoid(x):
    return torch.sigmoid(x)

def _layernorm(x, axis=-1, eps=1e-05):
    m = x.mean(dim=axis, keepdim=True)
    v = x.var(dim=axis, keepdim=True, unbiased=False)
    return (x - m) / torch.sqrt(v + eps)

def _scatter_add(tgt, idx, src, axis=0):
    return tgt.clone().index_add_(axis, idx, src)

def _segment_sum(src, seg, n):
    out = torch.zeros((n,) + src.shape[1:], dtype=src.dtype)
    return out.index_add_(0, seg, src)

def _pad(x, pw):
    flat = tuple((v for pair in reversed(pw) for v in pair))
    return torch.nn.functional.pad(x, flat)
kernel_name = 'adaLN_cond__grouped_kv_mqa__glu_gated_glu__prompt'

def setup_inputs():

    _w = lambda a: (lambda t: t.to(torch.bfloat16) if t.is_floating_point() else t)(torch.as_tensor(a))

    def _A_setup():
        B, S, D, H = (1, 2048, 1024, 32)
        Dh = D // H
        return {'x': _w((lambda *s: torch.randn(*s, dtype=torch.bfloat16) * 0.05)(B, S, D)), 'wq': _w((lambda *s: torch.randn(*s, dtype=torch.bfloat16) * 0.05)(D, H * Dh)), 'wk': _w((lambda *s: torch.randn(*s, dtype=torch.bfloat16) * 0.05)(D, Dh)), 'wv': _w((lambda *s: torch.randn(*s, dtype=torch.bfloat16) * 0.05)(D, Dh)), 'wo': _w((lambda *s: torch.randn(*s, dtype=torch.bfloat16) * 0.05)(H * Dh, D))}
    _A_in = _A_setup()

    def _B_setup():
        B, S, D, F = (1, 2048, 1024, 3584)
        return {'x': _w((lambda *s: torch.randn(*s, dtype=torch.bfloat16) * 0.05)(B, S, D)), 'w_gate': _w((lambda *s: torch.randn(*s, dtype=torch.bfloat16) * 0.05)(D, F)), 'w_up': _w((lambda *s: torch.randn(*s, dtype=torch.bfloat16) * 0.05)(D, F)), 'w_down': _w((lambda *s: torch.randn(*s, dtype=torch.bfloat16) * 0.05)(F, D))}
    _B_in = _B_setup()
    return {'A_x': _A_in['x'], 'A_wq': _A_in['wq'], 'A_wk': _A_in['wk'], 'A_wv': _A_in['wv'], 'A_wo': _A_in['wo'], 'B_x': _B_in['x'], 'B_w_gate': _B_in['w_gate'], 'B_w_up': _B_in['w_up'], 'B_w_down': _B_in['w_down'], 'c': _w((lambda *s: torch.randn(*s, dtype=torch.bfloat16) * 0.2)(1, 1024) * 8.0), 'w_mod': _w((lambda *s: torch.randn(*s, dtype=torch.bfloat16) * 0.2)(1024, 6 * 1024) * 1024 ** (-0.5) * 8.0)}

def reference(A_x, A_wq, A_wk, A_wv, A_wo, B_x, B_w_gate, B_w_up, B_w_down, c, w_mod):

    def _A_ref(x, wq, wk, wv, wo):
        B, S, D = x.shape
        H = 32
        Dh = D // H
        q = (lambda x, *d: x.permute(*d))((x @ wq).reshape(B, S, H, Dh), 0, 2, 1, 3)
        k = x @ wk
        v = x @ wv
        scores = torch.einsum('bhqd,bkd->bhqk', q, k) * Dh ** (-0.5)
        p = _softmax(scores, axis=-1)
        o = torch.einsum('bhqk,bkd->bhqd', p, v)
        return (lambda x, *d: x.permute(*d))(o, 0, 2, 1, 3).reshape(B, S, H * Dh) @ wo

    def _B_ref(x, w_gate, w_up, w_down):
        g = torch.einsum('bsd,df->bsf', x, w_gate)
        u = torch.einsum('bsd,df->bsf', x, w_up)
        h = _sigmoid(g) * u
        return torch.einsum('bsf,fd->bsd', h, w_down)
    x = A_x
    mod = (_silu(c) @ w_mod).reshape(c.shape[0], 6, 1, -1)
    sa, ca, ga, sb, cb, gb = (mod[:, 0].clone(), mod[:, 1].clone(), mod[:, 2].clone(), mod[:, 3].clone(), mod[:, 4].clone(), mod[:, 5].clone())
    h = _layernorm(x, axis=-1) * (1 + ca) + sa
    x = x + ga * _A_ref(h, A_wq, A_wk, A_wv, A_wo)
    h = _layernorm(x, axis=-1) * (1 + cb) + sb
    x = x + gb * _B_ref(h, B_w_gate, B_w_up, B_w_down)
    return x
```

```python
import re

def v(i, n=1): return f'v{i}' if n == 1 else f'v[{i}:{i+n-1}]'
def a(i, n=1): return f'a{i}' if n == 1 else f'a[{i}:{i+n-1}]'
def s(i, n=1): return f's{i}' if n == 1 else f's[{i}:{i+n-1}]'

_reg = re.compile(r'^(-|\|)?(abs\()?([vas])(\d+|\[(\d+):(\d+)\])\)?\|?$')
def regs_of(tok):
    tok = tok.strip()
    if tok in ('vcc',): return {('s', 106), ('s', 107)}
    if tok == 'vcc_lo': return {('s', 106)}
    if tok == 'vcc_hi': return {('s', 107)}
    if tok == 'exec': return {('s', 126), ('s', 127)}
    if tok == 'exec_lo': return {('s', 126)}
    if tok == 'exec_hi': return {('s', 127)}
    if tok == 'm0': return {('s', 124)}
    m = _reg.match(tok)
    if not m: return set()
    c = m.group(3)
    if m.group(5) is not None:
        return {(c, i) for i in range(int(m.group(5)), int(m.group(6)) + 1)}
    return {(c, int(m.group(4)))}

TRANS = ('v_exp_f32', 'v_log_f32', 'v_rcp_f32', 'v_rsq_f32', 'v_sqrt_f32', 'v_sin_f32', 'v_cos_f32')
VCC = {('s', 106), ('s', 107)}
EXEC = {('s', 126), ('s', 127)}
M0 = {('s', 124)}
DPPW = ('row_shr', 'row_shl', 'row_ror', 'quad_perm', 'row_mirror', 'row_half_mirror', 'row_bcast', 'row_newbcast', 'wave_')

class Ins:
    __slots__ = ('text', 'op', 'defs', 'uses', 'kind', 'tag', 'passes', 'A', 'B', 'C', 'dpp', 'wide', 'lds', 'pseudo', 'arg')
    def __init__(self, text, tag=None):
        self.text = text; self.tag = tag
        self.defs = set(); self.uses = set(); self.kind = 'other'; self.passes = 0
        self.A = self.B = self.C = set(); self.dpp = False; self.wide = False; self.lds = False
        self.pseudo = None; self.arg = None
        t = text.split(';')[0].strip()
        if t.startswith('@'):
            p = t[1:].split(None, 1); self.pseudo = p[0]; self.arg = p[1] if len(p) > 1 else None
            self.op = '@'; self.kind = 'pseudo'; return
        if t.endswith(':') or t.startswith('.') or not t:
            self.op = t; self.kind = 'label' if t.endswith(':') else 'dir'; return
        p = t.split(None, 1); op = p[0]; self.op = op
        rest = p[1] if len(p) > 1 else ''
        ops = []; cur = ''; d = 0
        for ch in rest:
            if ch == '[': d += 1
            if ch == ']': d -= 1
            if ch == ',' and d == 0: ops.append(cur.strip()); cur = ''
            else: cur += ch
        ops.append(cur.strip())
        mods = ''
        if ops and ' ' in ops[-1]:
            q = ops[-1].split(None, 1); ops[-1] = q[0]; mods = q[1]
        R = [regs_of(o) for o in ops]
        base = op.replace('_e32', '').replace('_e64', '').replace('_dpp', '').replace('_sdwa', '')
        if op.startswith('v_mfma'):
            self.kind = 'mfma'; self.defs = R[0]; self.A, self.B, self.C = R[1], R[2], R[3]
            self.uses = R[1] | R[2] | R[3]
            self.passes = 8 if '32x32x16' in op else 4 if ('16x16x32' in op or '16x16x16' in op) else None
            assert self.passes
        elif op.startswith('v_'):
            self.kind = 'valu'
            self.defs = set(R[0]); self.uses = set().union(*R[1:]) if len(R) > 1 else set()
            if base.startswith('v_permlane') and 'swap' in base:
                self.defs = R[0] | R[1]; self.uses = R[0] | R[1]; self.kind = 'valu'
            if base in ('v_fmac_f32', 'v_mac_f32', 'v_pk_fmac_f16', 'v_writelane_b32', 'v_dot2c_f32_bf16'): self.uses |= R[0]
            if base.startswith('v_cmpx'): self.defs |= EXEC
            if base == 'v_cndmask_b32' and len(ops) == 3: self.uses |= VCC
            if base in ('v_add_co_u32', 'v_sub_co_u32', 'v_addc_co_u32', 'v_div_scale_f32', 'v_mad_u64_u32'):
                self.defs |= R[1]; self.uses = set().union(*R[2:])
            if base == 'v_div_fmas_f32': self.uses |= VCC
            if any(w in mods for w in DPPW) or op.endswith('_dpp'):
                self.dpp = True; self.uses |= R[0]
            if 'dst_sel' in mods or 'op_sel' in mods and base.startswith('v_cvt'): self.uses |= R[0]
        elif op.startswith('ds_'):
            self.kind = 'ds'
            if op.startswith('ds_read') or op.startswith('ds_bpermute') or op.startswith('ds_permute') or op.startswith('ds_swizzle') or '_rtn_' in op:
                self.defs = R[0]; self.uses = set().union(*R[1:])
            else:
                self.uses = set().union(*R)
        elif op.startswith('buffer_') or op.startswith('global_'):
            self.kind = 'vmem'
            allm = ' ' + mods + ' '
            if ' lds ' in allm or '_lds_' in op:
                self.lds = True; self.uses = set().union(*R) | M0
            elif '_load' in op:
                self.defs = R[0]; self.uses = set().union(*R[1:])
            elif '_store' in op:
                self.uses = set().union(*R)
                self.wide = op.endswith('x4') or op.endswith('x3')
                self.C = R[0] if op.startswith('buffer_') else R[1]
            elif '_atomic' in op:
                self.uses = set().union(*R)
                if ' sc0 ' in allm: self.defs = R[0]
            elif op in ('buffer_wbl2', 'buffer_inv'):
                pass
            else: raise ValueError(text)
        elif op.startswith('s_load') or op.startswith('s_buffer_load') or op in ('s_memtime', 's_memrealtime'):
            self.kind = 'smem'; self.defs = R[0]; self.uses = set().union(*R[1:]) if len(R) > 1 else set()
        elif op.startswith('s_'):
            self.kind = 'salu'
            if op in ('s_waitcnt', 's_nop', 's_barrier', 's_endpgm', 's_branch', 's_setprio', 's_sleep') or op.startswith('s_cbranch'):
                self.kind = 'ctl'
            elif op.startswith('s_cmp') or op.startswith('s_bitcmp'):
                self.uses = set().union(*R)
            else:
                self.defs = set(R[0]); self.uses = set().union(*R[1:]) if len(R) > 1 else set()
                if 'saveexec' in op: self.defs |= EXEC; self.uses |= EXEC
                if op in ('s_addk_i32', 's_mulk_i32'): self.uses |= R[0]
        else:
            raise ValueError('unknown op: ' + text)

def states(ins):
    if ins.kind in ('pseudo', 'label', 'dir'): return 0
    if ins.op == 's_nop': return int(ins.text.split()[1], 0) + 1
    return 1

def need_gap(p, c):
    n = 0
    vd = {r for r in p.defs if r[0] in 'va'}
    sd = {r for r in p.defs if r[0] == 's'}
    if p.kind == 'valu':
        if c.kind == 'mfma':
            if vd & c.uses: n = max(n, 2)
            if sd & EXEC: n = max(n, 4)
        if c.kind == 'valu':
            cb = c.op
            if c.dpp and vd & c.uses: n = max(n, 2)
            if c.dpp and sd & EXEC: n = max(n, 5)
            if cb.startswith('v_permlane') and vd & c.uses: n = max(n, 2)
            if cb.startswith('v_permlane') and sd & EXEC: n = max(n, 4)
            if (cb.startswith('v_readlane') or cb.startswith('v_readfirstlane')) and vd & c.uses: n = max(n, 1)
            if (cb.startswith('v_readlane') or cb.startswith('v_readfirstlane') or cb.startswith('v_writelane')) and (sd & EXEC): n = max(n, 4)
            if sd & c.uses:
                n = max(n, 4 if (cb.startswith('v_readlane') or cb.startswith('v_writelane') or cb.startswith('v_div_fmas')) else 2)
            if any(p.op.startswith(t) for t in TRANS) and vd & c.uses: n = max(n, 1)
            if ('op_sel' in p.text or 'dst_sel' in p.text) and not p.op.startswith('v_pk') and vd & (c.uses | c.defs): n = max(n, 1)
        if c.kind in ('vmem',) and sd & c.uses: n = max(n, 5)
        if c.kind in ('salu', 'smem') and sd & c.uses: n = max(n, 1)
        if c.kind == 'ctl' and c.op.startswith('s_cbranch_vcc') and sd & VCC: n = max(n, 1)
    if p.kind == 'salu':
        if c.kind == 'vmem' and c.lds and sd & M0: n = max(n, 1)
    if p.kind == 'vmem' and p.wide:
        if p.C & c.defs: n = max(n, 2 if c.kind in ('valu', 'mfma') else 1)
    if p.kind == 'mfma':
        big = p.passes == 8
        if c.kind == 'mfma':
            if p.defs & (c.A | c.B): n = max(n, 12 if big else 8)
            if p.defs & c.C:
                if not (p.defs == c.C and p.op == c.op): n = max(n, 10 if big else 6)
            elif p.defs & c.defs and not (p.defs == c.defs and p.passes == c.passes):
                n = max(n, 10 if big else 6)
        elif c.kind in ('valu', 'vmem', 'ds'):
            if p.defs & (c.uses | c.defs): n = max(n, 12 if big else 8)
            if c.kind == 'valu' and p.C & c.defs: n = max(n, 7 if big else 3)
            if c.kind in ('vmem', 'ds') and p.C & c.defs: n = max(n, 7 if big else 3)
    return n

class Kernel:
    def __init__(self, name):
        self.name = name; self.ins = []
    def e(self, text, tag=None):
        if isinstance(text, (list, tuple)) and not isinstance(text, str):
            for t in text:
                if isinstance(t, tuple): self.ins.append(Ins(t[0], t[1]))
                else: self.ins.append(Ins(t))
            return
        for line in text.split('\n'):
            line = line.strip()
            if line: self.ins.append(Ins(line, tag))
    def insert_waits(self):
        out = []
        vm = []
        lg = []
        saved = {}
        def emit_wait(nv, nl):
            parts = []
            if nv is not None and nv < len(vm):
                assert nv <= 63, 'vmcnt overflow %d' % nv
                parts.append(f'vmcnt({nv})'); del vm[:len(vm) - nv]
            if nl is not None and nl < len(lg):
                if any(x[2] for x in lg): nl = 0
                if nl > 15: nl = 15
                if nl < len(lg):
                    parts.append(f'lgkmcnt({nl})'); del lg[:len(lg) - nl]
            if parts: out.append(Ins('s_waitcnt ' + ' '.join(parts)))
        for I in self.ins:
            if I.kind == 'pseudo':
                if I.pseudo == 'waitvm':
                    if I.arg in (None, 'all'): emit_wait(0, None)
                    else:
                        tags = I.arg.split()
                        idx = [k for k, x in enumerate(vm) if x[1] in tags]
                        if idx: emit_wait(len(vm) - 1 - idx[-1], None)
                elif I.pseudo == 'waitlg':
                    if I.arg in (None, 'all'): emit_wait(None, 0)
                    else:
                        tags = I.arg.split()
                        idx = [k for k, x in enumerate(lg) if x[1] in tags]
                        if idx: emit_wait(None, len(lg) - 1 - idx[-1])
                elif I.pseudo == 'waitall': emit_wait(0, 0)
                elif I.pseudo == 'save': saved[I.arg] = (list(vm), list(lg))
                elif I.pseudo == 'restore':
                    vm[:] = saved[I.arg][0]; lg[:] = saved[I.arg][1]
                elif I.pseudo == 'check':
                    ca = I.arg.split(); sv, sl = saved[ca[0]]
                    if len(ca) > 1:
                        assert not any(y[0] for y in vm[len(vm) - 0:]) ; sv = list(vm)
                    def norm(x): return [(frozenset(y[0]), y[1]) for y in x]
                    nv, nl = norm(vm), norm(lg); rv, rl = norm(sv), norm(sl)
                    assert (nv == rv[len(rv) - len(nv):] if nv else True) and len(nv) <= len(rv), f'vm state mismatch at {I.arg}\n{nv}\n{rv}'
                    assert (nl == rl[len(rl) - len(nl):] if nl else True) and len(nl) <= len(rl), f'lgkm state mismatch at {I.arg}\n{nl}\n{rl}'
                elif I.pseudo == 'clear': vm.clear(); lg.clear()
                elif I.pseudo in ('loophead', 'loopend', 'hzreset'): out.append(I)
                else: raise ValueError(I.text)
                continue
            touch = I.uses | I.defs
            nv = nl = None
            if touch:
                for k in range(len(vm) - 1, -1, -1):
                    if vm[k][0] & touch: nv = len(vm) - 1 - k; break
                for k in range(len(lg) - 1, -1, -1):
                    if lg[k][0] & touch: nl = len(lg) - 1 - k; break
            if I.op == 's_waitcnt':
                m = re.search(r'vmcnt\((\d+)\)', I.text)
                if m and int(m.group(1)) < len(vm): del vm[:len(vm) - int(m.group(1))]
                m = re.search(r'lgkmcnt\((\d+)\)', I.text)
                if m and int(m.group(1)) < len(lg):
                    n = int(m.group(1))
                    if not any(x[2] for x in lg) or n == 0: del lg[:len(lg) - n]
            emit_wait(nv, nl)
            if I.kind == 'vmem' and len(vm) >= 63: emit_wait(62, None)
            out.append(I)
            if I.kind == 'vmem': vm.append((set(I.defs), I.tag))
            elif I.kind == 'ds': lg.append((set(I.defs), I.tag, False))
            elif I.kind == 'smem': lg.append((set(I.defs), I.tag, True))
        self.ins = out
    def insert_nops(self):
        out = []; heads = {}
        W = 14
        def gap_for(hist, I):
            need = 0; d = 0
            for P in reversed(hist):
                if P.pseudo == 'hzreset': break
                if d >= W: break
                if P.kind not in ('pseudo', 'label', 'dir'):
                    g = need_gap(P, I)
                    if g - d > need: need = g - d
                d += states(P)
            return need
        self.nnops = 0
        for I in self.ins:
            if I.pseudo == 'loophead': heads[I.arg] = len(out); out.append(I); continue
            if I.pseudo == 'loopend':
                h = heads[I.arg]; hist = list(out); d = 0; k = h
                while d < W and k < len(out):
                    J = out[k]
                    if J.kind not in ('pseudo', 'label', 'dir'):
                        g = gap_for(hist, J)
                        assert g <= 0, f'back-edge hazard before {J.text} needs {g}'
                    hist.append(J); d += states(J); k += 1
                out.append(I); continue
            if I.kind not in ('pseudo', 'label', 'dir'):
                g = gap_for(out, I)
                if g > 0:
                    out.append(Ins(f's_nop {g-1}')); self.nnops += 1
            out.append(I)
        self.ins = out
    def text(self):
        self.insert_waits(); self.insert_nops()
        L = []
        for I in self.ins:
            if I.kind == 'pseudo': continue
            L.append(I.text if I.kind in ('label', 'dir') else ' ' + I.text)
        return '\n'.join(L)
    def maxregs(self):
        mv = ma = -1
        for I in self.ins:
            for c, i in I.defs | I.uses:
                if c == 'v': mv = max(mv, i)
                if c == 'a': ma = max(ma, i)
        return mv + 1, ma + 1

def interleave(main, fill, start=0, per=1, every=1):
    fill = list(fill); k = start
    while fill:
        if k >= len(main): main[-1].extend(fill); break
        for _ in range(per):
            if fill:
                x = fill.pop(0)
                if isinstance(x, list): main[k].extend(x)
                else: main[k].append(x)
        k += every
    return main

def flatten(slots):
    o = []
    for sl in slots: o.extend(sl)
    return o

def wrap_file(header, kernels, launches):
    L = [header.rstrip('\n')]
    for (n, g, b, l) in launches:
        L.append(f'; @launch kernel={n} grid=({g},1,1) block=({b},1,1) lds={l}')
    L.append('.amdgcn_target "amdgcn-amd-amdhsa--gfx950"')
    L.append('.text')
    desc = []
    for K in kernels:
        t = K.text()
        nv, na = K.maxregs()
        acc = max(4, (nv + 3) // 4 * 4)
        tot = acc + na if na else max(nv, 1)
        L += [f'.globl {K.name}', '.p2align 8', f'.type {K.name},@function', f'{K.name}:', t]
        desc += ['.p2align 6', f'.amdhsa_kernel {K.name}', f'  .amdhsa_next_free_vgpr {tot}', '  .amdhsa_next_free_sgpr 102',
                 f'  .amdhsa_accum_offset {acc}', '  .amdhsa_group_segment_fixed_size 0', '  .amdhsa_kernarg_size 112',
                 '  .amdhsa_user_sgpr_count 2', '  .amdhsa_user_sgpr_kernarg_segment_ptr 1', '  .amdhsa_system_sgpr_workgroup_id_x 1',
                 '.end_amdhsa_kernel']
    L.append('.section .rodata,"a"')
    L += desc
    return '\n'.join(L) + '\n'
```

```python
from asmlib import *
NAME = 'adaLN_cond__grouped_kv_mqa__glu_gated_glu__prompt'
KA = dict(x=0, wq=8, wk=16, wv=24, wo=32, wg=48, wu=56, wd=64, c=72, wmod=80, out=88, dbg=96, ws=104)
WS_MOD   = 0x0
WS_MODB  = 0x8000
WS_UTF   = 0x100000
WS_STATS = 0x200000
WS_KV    = 0x300000
WS_H1    = 0x400000
WS_O     = 0x800000
WS_X1    = 0xC00000
WS_X1S   = 0x1000000
WS_HH    = 0x1400000
LOG2E = 1.4426950408889634
import struct
def f2h(x): return '0x%08x' % struct.unpack('<I', struct.pack('<f', x))[0]

def srd(K, d, base, off, size):
    if off:
        K.e(f's_add_u32 s{d}, s{base}, {hex(off)}')
        K.e(f's_addc_u32 s{d+1}, s{base+1}, 0')
    else:
        K.e(f's_mov_b32 s{d}, s{base}')
        K.e(f's_mov_b32 s{d+1}, s{base+1}')
    K.e(f's_mov_b32 s{d+2}, {hex(size)}')
    K.e(f's_mov_b32 s{d+3}, 0x00020000')

def guard(K, nwg):
    K.e(f's_cmp_ge_u32 s2, {nwg}')
    K.e(f's_cbranch_scc1 {K.name}_end')

def finish(K):
    K.e(f'{K.name}_end:')
    K.e('s_endpgm')

HEADER = open('cdna_kernels/' + NAME + '.s.ref').read().split('; Override launch')[0]

WS_STAMP = 0x8000000
def stamp(K, i):
    K.e(f's_memtime s[{64+4*i}:{65+4*i}]')
    K.e(f's_memrealtime s[{66+4*i}:{67+4*i}]')
def dump_stamps(K, n, wsbase, kidx=0):
    K.e('@waitall')
    srd(K, 60, wsbase, WS_STAMP + kidx * 0x10000, 0x10000)
    K.e('s_lshl_b32 s59, s2, 2\ns_add_u32 s59, s59, s3\ns_lshl_b32 s59, s59, 6')
    K.e('v_mov_b32 v1, 0')
    for i in range(n):
        K.e(f'v_mov_b32 v2, s{64+4*i}\nv_mov_b32 v3, s{66+4*i}')
        K.e(f'buffer_store_dwordx2 v[2:3], v1, s[60:63], s59 offen offset:{8*i}')
        K.e('s_waitcnt vmcnt(0)')
```

```python
from common import *
MF = 'v_mfma_f32_16x16x32_bf16'
class G64:
    def __init__(self, K, nsteps, kmap, regs, NS=4, R=16, lds0=0, srdW=20, srdB=24, sW=40, sB=41, sM=17, kbtot=None, ramp=2):
        self.K = K; self.n = nsteps; self.kmap = kmap; self.NS = NS; self.R = R; self.lds0 = lds0
        self.srdW = srdW; self.srdB = srdB; self.sW = sW; self.sB = sB; self.sM = sM
        self.kbtot = kbtot or nsteps; self.ramp = ramp
        self.ACC = regs['acc']
        self.VD = regs['vd']
        self.VB = regs['vb']
        self.VT = regs['vt']
        self.AA = regs['aa']
        self.AB = regs['ab']
        self.tag = regs.get('tag', 'W'); self.nodma = regs.get('nodma'); self.nob = regs.get('nob')
    def acc(self, mt, nt): return self.ACC + 4 * (2 * mt + nt)
    def setup(self, vlane, swave, sn0, stt0, t0, t1):
        K = self.K; VD, VB, VT = self.VD, self.VB, self.VT
        K.e(f's_lshl_b32 s18, s{swave}, 16\ns_add_u32 s18, s18, s{sn0}')
        for i in range(4):
            if self.kmap == 'nat':
                K.e(f'v_bfe_u32 v{t0}, v{vlane}, 4, 1')
                if i & 1: K.e(f'v_or_b32 v{t0}, 2, v{t0}')
            else:
                K.e(f'v_bfe_u32 v{t0}, v{vlane}, 4, 2')
            K.e(f'v_lshlrev_b32 v{t0}, 1, v{t0}\nv_xor_b32 v{t0}, v{t0}, v{vlane}\nv_and_b32 v{t0}, 7, v{t0}\nv_lshlrev_b32 v{t0}, 4, v{t0}')
            K.e(f'v_lshrrev_b32 v{t1}, 3, v{vlane}\nv_lshl_add_u32 v{t0}, v{t1}, 11, v{t0}')
            K.e(f'v_add_u32 v{t0}, s18, v{t0}')
            K.e(f'v_add_u32 v{VD+i}, {i * (8 * 2048 - 1024)}, v{t0}')
        K.e(f's_lshl_b32 s{self.sM}, s{swave}, 12')
        if self.lds0: K.e(f's_add_u32 s{self.sM}, s{self.sM}, {self.lds0}')
        K.e(f's_mul_i32 s18, s{stt0}, {self.kbtot * 1024}')
        K.e(f'v_lshl_add_u32 v{VB}, v{vlane}, 4, s18\nv_add_u32 v{VB+1}, {self.kbtot * 1024}, v{VB}')
        if self.kmap == 'nat':    K.e(f'v_lshrrev_b32 v{t0}, 4, v{vlane}\nv_lshlrev_b32 v{t0}, 3, v{t0}')
        elif self.kmap == 'p16':  K.e(f'v_lshrrev_b32 v{t0}, 4, v{vlane}\nv_lshlrev_b32 v{t0}, 2, v{t0}')
        else:                     K.e(f'v_lshrrev_b32 v{t0}, 5, v{vlane}\nv_lshlrev_b32 v{t0}, 4, v{t0}\nv_bfe_u32 v{t1}, v{vlane}, 4, 1\nv_lshl_add_u32 v{t0}, v{t1}, 2, v{t0}')
        K.e(f'v_bfe_u32 v{t1}, v{vlane}, 2, 2\nv_add_u32 v{t0}, v{t0}, v{t1}\nv_lshlrev_b32 v{t0}, 7, v{t0}')
        K.e(f'v_and_b32 v{t1}, 3, v{vlane}\nv_lshl_add_u32 v{t0}, v{t1}, 3, v{t0}')
        if self.lds0: K.e(f'v_add_u32 v{t0}, {self.lds0}, v{t0}')
        K.e(f'v_bfe_u32 v{t1}, v{vlane}, 3, 2')
        for mt in range(4):
            K.e(f'v_xor_b32 v{VT+mt}, {mt}, v{t1}\nv_lshl_add_u32 v{VT+mt}, v{VT+mt}, 5, v{t0}')
            for g in range(1, (self.NS + 3) // 4): K.e(f'v_add_u32 v{VT+4*g+mt}, {65536*g}, v{VT+mt}')
        K.e(f's_mov_b32 m0, s{self.sM}\ns_mov_b32 s{self.sW}, 0\ns_mov_b32 s{self.sB}, 0')
    def dma(self, st):
        L = []
        for i in range(4):
            off = f' offset:{1024*i}' if i else ''
            g = [(f'buffer_load_dwordx4 v{self.VD+i}, {s(self.srdW,4)}, s{self.sW} offen{off} lds', f'{self.tag}{st}')]
            if self.nodma and st >= self.NS: g = ['s_nop 0']
            if i == 3: g += [f's_add_u32 s{self.sW}, s{self.sW}, {128*2048}', f's_add_u32 m0, s{self.sM}, {((st+1) % self.NS) * 16384}']
            L.append(g)
        return L
    def bload(self, t):
        L = []
        for nt in range(2):
            off = f' offset:{1024*(t%4)}' if t % 4 else ''
            g = [f'buffer_load_dwordx4 {a(self.AB + 8*(t%self.R) + 4*nt, 4)}, v{self.VB+nt}, {s(self.srdB,4)}, s{self.sB} offen{off}']
            if self.nob and t >= self.R: g = ['s_nop 0']
            if nt == 1 and t % 4 == 3: g.append(f's_add_u32 s{self.sB}, s{self.sB}, 4096')
            L.append(g)
        return L
    def areads(self, t):
        st, ks = t // 4, t % 4; slot = st % self.NS
        ttoff = {'nat': 512, 'p16': 2048, 'om': 1024}[self.kmap]
        L = []
        for mt in range(4):
            for tt in range(2):
                off = (slot % 4) * 16384 + ks * 4096 + tt * ttoff
                L.append(f'ds_read_b64_tr_b16 {a(self.AA + 16*(t%2) + 4*mt + 2*tt, 2)}, v{self.VT + 4*(slot//4) + mt} offset:{off}')
        return L
    def vmqueue(self):
        Q = []
        NST = self.n // 4
        for st in range(NST):
            d = self.dma(st)
            for i in range(4):
                Q.append((4 * st - 1, 4 * (st - self.NS) + 3 if st >= self.NS else -1, d[i]))
            for t in range(4 * st, 4 * st + 4):
                for g in self.bload(t): Q.append((t, t - self.R + 1 if t >= self.R else -1, g))
        return Q
    def prologue(self, nst=1, extra=None):
        self.Q = self.vmqueue()
        while self.Q and self.Q[0][0] < 4 * nst - 1 or (self.Q and self.Q[0][0] == 4 * nst - 1 and 'lds' not in str(self.Q[0][2][0])):
            self.K.e(self.Q.pop(0)[2])
        if extra: self.K.e(extra)
    def main(self, side=None, first_c='0', maxper=4):
        K = self.K; T = self.n; NST = T // 4; side = side or {}
        K.e(f'@waitvm {self.tag}0\ns_barrier')
        K.e(self.areads(0))
        for t in range(T):
            st, ks = t // 4, t % 4
            slots = []
            for mt in range(4):
                for k in range(2):
                    nt = k if mt % 2 == 0 else 1 - k
                    d = v(self.acc(mt, nt), 4); c = first_c if t == 0 else d
                    slots.append([f'{MF} {d}, {a(self.AA + 16*(t%2) + 4*mt, 4)}, {a(self.AB + 8*(t%self.R) + 4*nt, 4)}, {c}'])
            pre = []
            if ks == 3 and st + 1 < NST: pre = ['@waitlg all', f'@waitvm {self.tag}{st+1}', 's_barrier']
            if t + 1 < T: interleave(slots, self.areads(t + 1), 0, 1, 1)
            vm = []
            while self.Q and len(vm) < maxper and self.Q[0][1] <= t: vm.append(self.Q.pop(0)[2])
            if vm: interleave(slots, vm, 1, 1, 2 if len(vm) <= 4 else 1)
            if t in side: interleave(slots, side[t], 0, 1, 1)
            K.e(pre); K.e(flatten(slots))
        assert not self.Q
```

```python
from common import *
MF = 'v_mfma_f32_16x16x32_bf16'
def lane_wave(K):
    K.e('v_lshrrev_b32 v1, 6, v0\nv_readfirstlane_b32 s3, v1\nv_and_b32 v0, 63, v0')

def round_bf16(K, d, srcv):
    K.e(f'v_cvt_pk_bf16_f32 v{d+1}, v{srcv}, v{srcv}\nv_and_b32 v{d}, 0xffff0000, v{d+1}')

def gemv_block(K, scb, sC, sWm, sWs):
    LC = 65536; LR = LC + 2048
    srd(K, 20, sWm, 0, 1024 * 12288)
    srd(K, 24, sC, 0, 2048)
    K.e(f's_mul_i32 s16, s3, {256*12288}\ns_lshl_b32 s17, s{scb}, 6\ns_add_u32 s16, s16, s17')
    K.e('s_mov_b32 s17, 12288\nv_lshrrev_b32 v1, 2, v0\nv_mul_lo_u32 v1, v1, s17\nv_and_b32 v2, 3, v0\nv_lshl_add_u32 v1, v2, 4, v1')
    K.e('s_lshl_b32 s18, s3, 8\nv_lshl_add_u32 v3, v0, 2, s18\nv_lshlrev_b32 v3, 1, v3')
    K.e('buffer_load_dwordx2 v[4:5], v3, s[24:27], 0 offen')
    K.e('s_lshl_b32 s18, s3, 14\ns_mov_b32 m0, s18')
    for i in range(16):
        K.e(f'buffer_load_dwordx4 v1, s[20:23], s16 offen lds', 'W')
        if i < 15: K.e(f's_add_u32 m0, s18, {1024*(i+1)}\ns_add_u32 s16, s16, {16*12288}')
    K.e('v_lshlrev_b32 v6, 16, v4\nv_and_b32 v7, 0xffff0000, v4\nv_lshlrev_b32 v8, 16, v5\nv_and_b32 v9, 0xffff0000, v5')
    for j in range(4): K.e(f'v_mul_f32 v{10+j}, {f2h(-LOG2E)}, v{6+j}')
    for j in range(4): K.e(f'v_exp_f32 v{10+j}, v{10+j}')
    for j in range(4): K.e(f'v_add_f32 v{10+j}, 1.0, v{10+j}')
    for j in range(4): K.e(f'v_rcp_f32 v{10+j}, v{10+j}')
    for j in range(4): K.e(f'v_mul_f32 v{6+j}, v{6+j}, v{10+j}')
    K.e('v_cvt_pk_bf16_f32 v4, v6, v7\nv_cvt_pk_bf16_f32 v5, v8, v9')
    K.e(f'v_add_u32 v3, {LC}, v3\nds_write_b64 v3, v[4:5]')
    K.e(f'v_lshrrev_b32 v2, 4, v0\nv_lshlrev_b32 v2, 4, v2\ns_lshl_b32 s19, s3, 9\ns_add_u32 s19, s19, {LC}\nv_add_u32 v2, s19, v2')
    K.e('v_lshrrev_b32 v6, 4, v0\nv_lshlrev_b32 v6, 3, v6\nv_bfe_u32 v7, v0, 2, 2\nv_add_u32 v6, v6, v7\nv_lshlrev_b32 v6, 6, v6')
    K.e('v_and_b32 v7, 3, v0\nv_lshl_add_u32 v6, v7, 3, v6\nv_add_u32 v6, s18, v6')
    K.e('@waitlg all\ns_barrier')
    for st in range(8): K.e(f'ds_read_b128 {v(16+4*st,4)}, v2 offset:{64*st}')
    for st in range(8):
        K.e(f's_waitcnt vmcnt({14-2*st})')
        for mt in range(2):
            for tt in range(2):
                K.e(f'ds_read_b64_tr_b16 {v(48+8*(st%2)+4*mt+2*tt,2)}, v6 offset:{2048*st + 256*tt + 32*mt}')
        for mt in range(2):
            K.e(f'{MF} {v(8+4*mt,4)}, {v(48+8*(st%2)+4*mt,4)}, {v(16+4*st,4)}, ' + ('0' if st == 0 else v(8+4*mt,4)))
    K.e(f'v_lshrrev_b32 v2, 4, v0\nv_lshlrev_b32 v2, 4, v2\ns_lshl_b32 s19, s3, 7\ns_add_u32 s19, s19, {LR}\nv_add_u32 v2, s19, v2')
    K.e('v_and_b32 v7, 15, v0\nv_cmp_eq_u32 vcc, 0, v7\ns_and_saveexec_b64 s[28:29], vcc')
    K.e('ds_write_b128 v2, v[8:11]\nds_write_b128 v2, v[12:15] offset:64')
    K.e('s_mov_b64 exec, s[28:29]')
    srd(K, 20, sWs, WS_MOD, 6144 * 4)
    srd(K, 24, sWs, WS_MODB, 6144 * 2)
    K.e(f'v_and_b32 v7, 31, v0\nv_lshlrev_b32 v2, 2, v7\nv_add_u32 v3, {LR}, v2')
    K.e('@waitlg all\ns_barrier')
    K.e(f's_cmp_lg_u32 s3, 0\ns_cbranch_scc1 {K.name}_end')
    for w in range(4): K.e(f'ds_read_b32 v{8+w}, v3 offset:{128*w}')
    K.e('v_add_f32 v8, v8, v9\nv_add_f32 v10, v10, v11\nv_add_f32 v8, v8, v10')
    round_bf16(K, 8, 8)
    K.e(f's_lshr_b32 s16, s{scb}, 5\ns_cmp_eq_u32 s16, 1\ns_cselect_b32 s17, 1.0, 0\ns_cmp_eq_u32 s16, 4\ns_cselect_b32 s17, 1.0, s17')
    K.e('v_add_f32 v8, s17, v8')
    round_bf16(K, 8, 8)
    K.e(f's_lshl_b32 s16, s{scb}, 7\ns_lshl_b32 s17, s{scb}, 6\nv_lshlrev_b32 v3, 1, v7')
    K.e('s_mov_b32 exec_hi, 0')
    K.e('buffer_store_dword v8, v2, s[20:23], s16 offen\nbuffer_store_short v9, v3, s[24:27], s17 offen')

def touch(K, sbase, size, soff, n, step, vaddr, vdst, sd=20):
    srd(K, sd, sbase, 0, size)
    for i in range(n):
        K.e(f'buffer_load_dword v{vdst+i}, v{vaddr}, {s(sd,4)}, s{soff} offen')
        if i < n - 1: K.e(f's_add_u32 s{soff}, s{soff}, {step}')

def build_k1(name='k1_kernel', opt=None):
    opt = opt or {}
    K = Kernel(name)
    guard(K, 256)
    if opt.get('stamp'): stamp(K, 0)
    K.e(f's_load_dwordx4 s[4:7], s[0:1], {KA["c"]}')
    K.e(f's_load_dwordx2 s[8:9], s[0:1], {KA["ws"]}')
    K.e(f's_load_dwordx8 s[36:43], s[0:1], 0')
    lane_wave(K)
    K.e('s_and_b32 s10, s2, 7\ns_lshr_b32 s11, s2, 3')
    K.e(f's_cmp_ge_u32 s2, 192\ns_cbranch_scc1 {name}_pf')
    K.e('s_mul_i32 s12, s10, 24\ns_add_u32 s12, s12, s11')
    K.e('@save a')
    gemv_block(K, 12, 4, 6, 8)
    if opt.get('stamp'):
        K.e('s_mov_b64 exec, -1')
        for i in (1, 2, 3): stamp(K, i)
        K.e('@waitall'); stamp(K, 4); dump_stamps(K, 5, 8, opt.get('kidx', 0))
    K.e('s_endpgm')
    K.e(f'{name}_pf:\n@restore a\n@hzreset')
    K.e('s_sub_u32 s11, s11, 24\ns_lshl_b32 s11, s11, 2\ns_add_u32 s11, s11, s3')
    K.e('v_lshlrev_b32 v1, 6, v0')
    srd(K, 32, 8, WS_FLAG, F_SIZE)
    K.e(f's_lshl_b32 s12, s10, 5\ns_add_u32 s12, s12, s11\ns_lshl_b32 s12, s12, {6 + FSH}\nv_lshlrev_b32 v2, {FSH}, v0\nv_mov_b32 v4, 0')
    K.e('buffer_store_dword v4, v2, s[32:35], s12 offen')
    K.e('s_lshl_b32 s12, s10, 19\ns_lshl_b32 s13, s11, 14\ns_add_u32 s12, s12, s13')
    touch(K, 36, 2048 * 2048, 12, 4, 4096, 1, 8)
    K.e('s_lshl_b32 s12, s11, 11\ns_and_b32 s12, s12, 0xf000\ns_mov_b32 s13, s12')
    K.e('s_bitcmp1_b32 s11, 0\ns_cselect_b32 s40, s42, s40\ns_cselect_b32 s41, s43, s41')
    touch(K, 40, 65536, 12, 1, 0, 1, 12, sd=24)
    K.e('v_lshrrev_b32 v2, 4, v0\nv_lshlrev_b32 v2, 11, v2\nv_and_b32 v3, 15, v0\nv_lshl_add_u32 v2, v3, 6, v2')
    K.e('s_lshl_b32 s12, s11, 16\ns_and_b32 s13, s10, 1\ns_lshl_b32 s13, s13, 10\ns_add_u32 s12, s12, s13')
    touch(K, 38, 1024 * 2048, 12, 8, 8192, 2, 13, sd=28)
    K.e('@waitall')
    finish(K)
    return K, (name, 256, 256, 65536 + 2048 + 512)
if __name__ == '__main__':
    from mk import onefile
    onefile('k1a.s', [build_k1(opt=dict(stamp=1))])
```

```python
from k1 import *
def build_k2(name='k2_kernel', opt=None):
    opt = opt or {}
    K = Kernel(name)
    guard(K, 256)
    if opt.get('stamp'): stamp(K, 0)
    K.e(f's_load_dwordx2 s[4:5], s[0:1], {KA["x"]}')
    K.e(f's_load_dwordx4 s[12:15], s[0:1], {KA["wk"]}')
    K.e(f's_load_dwordx2 s[8:9], s[0:1], {KA["ws"]}')
    lane_wave(K)
    LM = 65536; LS = LM + 8192; LR = 0
    K.e('s_and_b32 s10, s2, 7\ns_lshr_b32 s11, s2, 3\ns_and_b32 s6, s11, 1\ns_lshr_b32 s11, s11, 1\ns_lshl_b32 s10, s10, 4\ns_add_u32 s7, s10, s11')
    K.e('v_and_b32 v1, 15, v0\nv_lshlrev_b32 v1, 11, v1\nv_lshrrev_b32 v2, 4, v0\nv_lshl_add_u32 v1, v2, 4, v1')
    K.e('s_lshl_b32 s16, s7, 15\ns_lshl_b32 s17, s3, 9\ns_add_u32 s16, s16, s17')
    srd(K, 20, 4, 0, 2048 * 2048)
    X = 16
    for st in range(8): K.e(f'buffer_load_dwordx4 {v(X+4*st,4)}, v1, s[20:23], s16 offen offset:{64*st}')
    K.e('s_cmp_eq_u32 s6, 0\ns_cselect_b32 s24, s12, s14\ns_cselect_b32 s25, s13, s15\ns_mov_b32 s26, 65536\ns_mov_b32 s27, 0x00020000')
    K.e('v_lshlrev_b32 v3, 4, v0\ns_lshl_b32 s18, s3, 14\ns_mov_b32 m0, s18\ns_mov_b32 s19, s18')
    srd(K, 28, 8, WS_MOD, 8192)
    for i in range(16):
        K.e(f'buffer_load_dwordx4 v3, s[24:27], s19 offen offset:{1024*(i%4)} lds', 'W')
        if i % 4 == 3 and i < 15: K.e('s_add_u32 m0, m0, 4096\ns_add_u32 s19, s19, 4096')
    K.e(f's_lshl_b32 s19, s3, 11\ns_add_u32 m0, s19, {LM}\ns_lshl_b32 s19, s3, 10')
    K.e('buffer_load_dwordx4 v3, s[28:31], s19 offen lds', 'M')
    K.e('s_add_u32 m0, m0, 1024\ns_add_u32 s19, s19, 4096')
    K.e('buffer_load_dwordx4 v3, s[28:31], s19 offen lds', 'M')
    F = 48
    S = 4
    for st in range(8):
        for r in range(4):
            d = F + 8 * st + 2 * r
            K.e(f'v_lshlrev_b32 v{d}, 16, v{X+4*st+r}\nv_and_b32 v{d+1}, 0xffff0000, v{X+4*st+r}')
            if st == 0 and r == 0: K.e(f'v_mov_b32 v4, v{d}\nv_mov_b32 v5, v{d+1}\nv_pk_mul_f32 v[6:7], {v(d,2)}, {v(d,2)}')
            else: K.e(f'v_pk_add_f32 v[4:5], v[4:5], {v(d,2)}\nv_pk_fma_f32 v[6:7], {v(d,2)}, {v(d,2)}, v[6:7]')
    K.e('v_add_f32 v4, v4, v5\nv_add_f32 v5, v6, v7')
    for sw in ('32', '16'):
        K.e(f'v_mov_b32 v6, v4\nv_mov_b32 v7, v5\nv_permlane{sw}_swap_b32 v4, v6\nv_permlane{sw}_swap_b32 v5, v7\nv_add_f32 v4, v4, v6\nv_add_f32 v5, v5, v7')
    K.e(f'v_and_b32 v8, 15, v0\nv_lshlrev_b32 v8, 3, v8\nv_add_u32 v8, {LS}, v8\ns_lshl_b32 s19, s3, 7\nv_add_u32 v9, s19, v8')
    K.e('ds_write_b64 v9, v[4:5]')
    K.e(f'v_lshrrev_b32 v9, 4, v0\nv_lshlrev_b32 v9, 5, v9\ns_lshl_b32 s19, s3, 11\ns_add_u32 s19, s19, {LM}\nv_add_u32 v9, s19, v9')
    K.e('v_lshrrev_b32 v10, 4, v0\nv_lshlrev_b32 v10, 3, v10\nv_bfe_u32 v11, v0, 2, 2\nv_add_u32 v10, v10, v11\nv_lshlrev_b32 v10, 6, v10')
    K.e('v_and_b32 v11, 3, v0\nv_lshl_add_u32 v10, v11, 3, v10\nv_add_u32 v10, s18, v10')
    srd(K, 32, 8, WS_H1, 0x400000)
    K.e('s_lshl_b32 s16, s7, 15\ns_lshl_b32 s17, s3, 13\ns_add_u32 s16, s16, s17')
    K.e('@waitlg all\ns_barrier')
    if opt.get('stamp'): stamp(K, 1)
    for w in range(4): K.e(f'ds_read_b64 {v(X+2*w,2)}, v8 offset:{128*w}')
    K.e(f'v_pk_add_f32 {v(X,2)}, {v(X,2)}, {v(X+2,2)}\nv_pk_add_f32 {v(X+4,2)}, {v(X+4,2)}, {v(X+6,2)}\nv_pk_add_f32 v[4:5], {v(X,2)}, {v(X+4,2)}')
    K.e(f'v_mul_f32 v4, {f2h(-1.0/1024)}, v4\nv_mul_f32 v5, {f2h(1.0/1024)}, v5\nv_fma_f32 v5, -v4, v4, v5\nv_max_f32 v5, 0, v5\nv_add_f32 v5, {f2h(1e-5)}, v5')
    K.e('v_rsq_f32 v5, v5\ns_nop 0\nv_mul_f32 v4, v4, v5')
    K.e('@waitvm M')
    MB = 112
    AF = 144
    ACC = 12
    ACC = 160
    def mreads(st):
        b = MB + 16 * (st % 2)
        return [f'ds_read_b128 {v(b+8*vec+4*hh,4)}, v9 offset:{1024*vec + 128*st + 16*hh}' for vec in range(2) for hh in range(2)]
    def areads(st):
        return [f'ds_read_b64_tr_b16 {v(AF+8*(st%2)+4*dt+2*tt,2)}, v10 offset:{2048*st + 256*tt + 32*dt}' for dt in range(2) for tt in range(2)]
    def body(half):
        K.e(mreads(0) + areads(0))
        for st in range(8):
            if st < 7: K.e(mreads(st + 1) + areads(st + 1))
            b = MB + 16 * (st % 2); f = F + 8 * st; H = X + 4 * st
            for j in range(0, 8, 2): K.e(f'v_pk_fma_f32 {v(f+j,2)}, {v(f+j,2)}, v[4:5], v[4:5] op_sel:[0,1,0] op_sel_hi:[1,1,0]')
            for j in range(0, 8, 2): K.e(f'v_pk_fma_f32 {v(f+j,2)}, {v(f+j,2)}, {v(b+8+j,2)}, {v(b+j,2)}')
            for j in range(0, 8, 2): K.e(f'v_cvt_pk_bf16_f32 v{H+j//2}, v{f+j}, v{f+j+1}')
            if st // 4 == half: K.e(f'buffer_store_dwordx4 {v(H,4)}, v3, s[32:35], s16 offen offset:{1024*(st%4)}')
            for dt in range(2):
                A = v(AF + 8 * (st % 2) + 4 * dt, 4); c = '0' if st == 0 else v(ACC + 4 * dt, 4)
                K.e(f'{MF} {v(ACC+4*dt,4)}, {A}, {v(H,4)}, {c}' if half == 0 else f'{MF} {v(ACC+4*dt,4)}, {v(H,4)}, {A}, {c}')
    K.e(f's_cmp_eq_u32 s6, 0\ns_cbranch_scc1 {name}_k')
    K.e('@save b')
    K.e('s_add_u32 s16, s16, 4096')
    body(1)
    K.e('v_and_b32 v1, 15, v0\nv_bfe_u32 v2, v0, 4, 1\nv_lshl_add_u32 v1, v2, 5, v1\nv_lshlrev_b32 v1, 4, v1\nv_lshrrev_b32 v2, 5, v0\nv_lshl_add_u32 v1, v2, 3, v1')
    K.e('s_and_b32 s17, s7, 1\ns_lshl_b32 s17, s17, 10\ns_add_u32 s17, s17, 2048\ns_lshl_b32 s19, s3, 8\ns_add_u32 s17, s17, s19')
    K.e(f's_nop 7\ns_branch {name}_j')
    K.e(f'{name}_k:\n@restore b\n@hzreset')
    body(0)
    K.e('v_and_b32 v1, 15, v0\nv_lshrrev_b32 v2, 5, v0\nv_lshl_add_u32 v1, v2, 5, v1\nv_lshlrev_b32 v1, 4, v1\nv_bfe_u32 v2, v0, 4, 1\nv_lshl_add_u32 v1, v2, 3, v1')
    K.e('s_and_b32 s17, s7, 1\ns_lshl_b32 s17, s17, 8\ns_lshl_b32 s19, s3, 10\ns_add_u32 s17, s17, s19')
    K.e(f'{name}_j:')
    if opt.get('stamp'): stamp(K, 2)
    K.e('v_add_u32 v2, s18, v3')
    K.e(f'ds_write_b128 v2, {v(ACC,4)}\nds_write_b128 v2, {v(ACC+4,4)} offset:1024')
    srd(K, 20, 8, WS_KV, 0x40000)
    K.e('s_lshr_b32 s19, s7, 1\ns_lshl_b32 s19, s19, 12\ns_add_u32 s17, s17, s19')
    K.e('s_lshl_b32 s19, s3, 10\nv_add_u32 v2, s19, v3')
    K.e('@waitlg all\ns_barrier')
    K.e(f's_cmp_ge_u32 s3, 2\ns_cbranch_scc1 {name}_end')
    for w in range(4): K.e(f'ds_read_b128 {v(X+4*w,4)}, v2 offset:{16384*w}')
    for j in (0, 2):
        K.e(f'v_pk_add_f32 {v(X+j,2)}, {v(X+j,2)}, {v(X+4+j,2)}\nv_pk_add_f32 {v(X+8+j,2)}, {v(X+8+j,2)}, {v(X+12+j,2)}\nv_pk_add_f32 {v(X+j,2)}, {v(X+j,2)}, {v(X+8+j,2)}')
    K.e(f'v_cvt_pk_bf16_f32 v4, v{X}, v{X+1}\nv_cvt_pk_bf16_f32 v5, v{X+2}, v{X+3}')
    K.e('buffer_store_dwordx2 v[4:5], v1, s[20:23], s17 offen')
    if opt.get('stamp'):
        stamp(K, 3); K.e('@waitall'); stamp(K, 4); dump_stamps(K, 5, 8, opt.get('kidx', 0))
    finish(K)
    return K, (name, 256, 256, LS + 512)
if __name__ == '__main__':
    from mk import onefile
    onefile('k2a.s', [build_k2(opt=dict(stamp=1))])
```

```python
from k46 import *
M32 = 'v_mfma_f32_32x32x16_bf16'
def spread(mf, va, first=None):
    out = []; n = len(mf)
    for i, m in enumerate(mf):
        out.append([m])
        out[-1] += va[len(va) * i // n: len(va) * (i + 1) // n]
    return out

def build_k3(name='k3_kernel', R=16, opt=None):
    opt = opt or {}
    K = Kernel(name)
    guard(K, 256)
    if opt.get('stamp'): stamp(K, 0)
    K.e(f's_load_dwordx2 s[4:5], s[0:1], {KA["wq"]}')
    K.e(f's_load_dwordx2 s[8:9], s[0:1], {KA["ws"]}')
    K.e(f's_load_dwordx2 s[6:7], s[0:1], {KA["wo"]}')
    K.e(f's_load_dwordx4 s[44:47], s[0:1], {KA["wg"]}')
    tile_ids(K)
    regs = dict(acc=4, vd=36, vb=40, vt=42, aa=0, ab=32)
    G = G64(K, 32, 'nat', regs, NS=4, R=R)
    G.setup(0, 3, 14, 15, 1, 2)
    srd(K, 20, 4, 0, 1024 * 2048)
    srd(K, 24, 8, WS_H1, 0x400000)
    G.prologue(opt.get('pro', 2))
    S = [48, 64]; NM = [80, 96]; P = [112, 120]; L = [128, 132]; O = [136, 152]; Q = [168, 176]; SEL = 184
    F = [188, 204]; VRD = 220; VL = 221; VS0 = 222; VB2 = 224; VJ = 225; VO = 226; VU = 227; VM = 229
    RING = 65536; FLAG = 131072
    fr = v
    if opt.get('fa'): fr = a; F = [160, 176]
    srd(K, 28, 8, WS_KV, 0x40000)
    srd(K, 52, 6, 0, 1024 * 2048)
    K.e(f'v_lshlrev_b32 v{VL}, 4, v0\nv_add_u32 v{VB2}, {RING}, v{VL}')
    K.e(f's_lshl_b32 s56, s3, 12\ns_add_u32 s6, s56, 2048\ns_add_u32 s56, s56, {RING}')
    K.e(f's_lshl_b32 s7, s2, 2\ns_add_u32 s7, s7, s3\ns_lshl_b32 s7, s7, 11\nv_lshlrev_b32 v{VJ}, 5, v0')
    K.e('s_and_b32 s10, s2, 3\ns_lshr_b32 s11, s2, 2\ns_cmp_ge_u32 s11, 28\ns_cselect_b32 s32, s46, s44\ns_cselect_b32 s33, s47, s45')
    K.e('s_cselect_b32 s16, 28, 0\ns_cselect_b32 s12, 8, 0\ns_sub_u32 s11, s11, s16')
    K.e(f's_cmp_ge_u32 s2, 224\ns_cselect_b32 s34, 0, {1024*7168}\ns_mov_b32 s35, 0x00020000')
    K.e('v_lshrrev_b32 v1, 4, v0\nv_mul_u32_u24 v2, 7168, v1\nv_lshlrev_b32 v1, 1, v1\nv_xor_b32 v1, v1, v0\nv_and_b32 v1, 15, v1')
    K.e(f'v_lshl_add_u32 v{VS0}, v1, 4, v2\nv_xor_b32 v1, 8, v1\nv_lshl_add_u32 v1, v1, 4, v2\nv_add_u32 v{VS0+1}, {4*7168-1024}, v1')
    def ring_pro():
        Lq = [[f'buffer_load_dwordx4 {fr(F[1]+8+4*b,4)}, v{VL}, s[28:31], 0 offen offset:{1024*b}'] for b in range(2)]
        for st in range(4):
            for i in range(4):
                g = []
                if i == 0: g = [f's_add_u32 m0, s56, {16384*st}', ('s_mov_b32 s42, s6' if st == 0 else 's_add_u32 s42, s42, 16384')]
                Lq.append(g + [(f'buffer_load_dwordx4 v{VL}, s[28:31], s42 offen offset:{1024*i} lds', f'R{st}')])
        return Lq
    G.Q.append((99, 0, [f'buffer_load_dword v{VJ}, v{VJ}, s[52:55], s7 offen']))
    for g in ring_pro(): G.Q.append((99, 0, g))
    K.e(f'v_lshrrev_b32 v1, 2, v0\nv_xor_b32 v1, v1, v0\nv_bfe_u32 v1, v1, 2, 1\nv_add_u32 v1, -1, v1\nv_and_b32 v{SEL}, 0x3f803f80, v1')
    for i in range(1, 4): K.e(f'v_mov_b32 v{SEL+i}, v{SEL}')
    srd(K, 36, 8, WS_O, 0x400000)
    srd(K, 44, 8, WS_MODB, 6144 * 2)
    srd(K, 48, 8, WS_UTF, 224 * 1024)
    K.e(f'v_bfe_u32 v1, v0, 4, 1\nv_lshlrev_b32 v1, 15, v1\nv_and_b32 v2, 15, v0\nv_lshl_add_u32 v1, v2, 4, v1\nv_lshrrev_b32 v2, 5, v0\nv_lshl_add_u32 v{VO}, v2, 8, v1')
    K.e('v_lshrrev_b32 v1, 2, v0\nv_and_b32 v2, 7, v1\ns_lshl_b32 s16, s3, 1\nv_xor_b32 v2, s16, v2\nv_lshlrev_b32 v1, 8, v1\nv_lshl_add_u32 v1, v2, 5, v1')
    K.e(f'v_and_b32 v2, 3, v0\nv_lshl_add_u32 v{VU}, v2, 3, v1\nv_xor_b32 v{VU+1}, 32, v{VU}')
    K.e(f'v_and_b32 v1, 1, v0\nv_lshlrev_b32 v1, 11, v1\nv_sub_u32 v1, 8192, v1\nv_lshrrev_b32 v2, 4, v0\nv_lshl_add_u32 v1, v2, 3, v1\ns_lshl_b32 s16, s10, 9\nv_add_u32 v{VM}, s16, v1')
    K.e(f's_mov_b32 s4, {f2h(LOG2E * 32 ** -0.5)}\ns_mov_b32 s5, s4\ns_mov_b32 s19, 0')
    if opt.get('stamp'): K.e('@waitvm W0'); stamp(K, 1)
    G.main({}, maxper=opt.get('maxper', 5))
    for mt in range(4):
        q = Q[mt >> 1] + 4 * (mt & 1)
        for nt in range(2):
            A0 = G.acc(mt, nt)
            for j in (0, 2): K.e(f'v_pk_mul_f32 {v(A0+j,2)}, {v(A0+j,2)}, s[4:5]')
            K.e(f'v_cvt_pk_bf16_f32 v{q+2*nt}, v{A0}, v{A0+1}\nv_cvt_pk_bf16_f32 v{q+2*nt+1}, v{A0+2}, v{A0+3}')
        K.e(f'v_permlane16_swap_b32 v{q}, v{q+2}\nv_permlane16_swap_b32 v{q+1}, v{q+3}')
    def qk(h, fb, c): return [f'{M32} {v(S[h],16)}, {fr(fb+8,4)}, {v(Q[h],4)}, {c}', f'{M32} {v(S[h],16)}, {fr(fb+12,4)}, {v(Q[h]+4,4)}, {v(S[h],16)}']
    def pv(h, fb): return [f'{M32} {v(O[h],16)}, {fr(fb+4*b,4)}, {v(P[h]+4*b,4)}, {v(O[h],16)}' for b in range(2)]
    def ls(h): return [f'{MF} {v(L[h],4)}, {v(SEL,4)}, {v(P[h]+4*b,4)}, {v(L[h],4)}' for b in range(2)]
    def ex(h):
        va = []; s0 = S[h]; t0 = (4 + 16 * h) if opt.get('tmp') else s0
        for i in range(0, 16, 2):
            va += [f'v_exp_f32 v{t0+i}, v{s0+i}', f'v_exp_f32 v{t0+i+1}, v{s0+i+1}']
            if i >= 2: va.append(f'v_cvt_pk_bf16_f32 v{P[h]+i//2-1}, v{t0+i-2}, v{t0+i-1}')
        va.append(f'v_cvt_pk_bf16_f32 v{P[h]+7}, v{t0+14}, v{t0+15}')
        return va
    def rowmax(h, d, init):
        s0 = S[h]
        r = [f'v_max3_f32 v{d}, v{s0}, v{s0+1}, ' + (f'v{s0+2}' if init else f'v{d}')]
        k = 3 if init else 2
        while k < 15: r.append(f'v_max3_f32 v{d}, v{s0+k}, v{s0+k+1}, v{d}'); k += 2
        if k == 15: r.append(f'v_max_f32 v{d}, v{s0+15}, v{d}')
        return r
    def bcast(h, d, bias):
        K.e(f'v_mov_b32 v3, v{d}\nv_permlane32_swap_b32 v{d}, v3\nv_max_f32 v{d}, v{d}, v3\nv_sub_f32 v{NM[h]}, {f2h(-bias)}, v{d}')
        for i in range(1, 16): K.e(f'v_mov_b32 v{NM[h]+i}, v{NM[h]}')
    a0 = qk(0, F[1], '0'); b0 = qk(1, F[1], '0')
    K.e([a0[0], b0[0], a0[1], b0[1]])
    for h in range(2): K.e(rowmax(h, 1 + h, True)); bcast(h, 1 + h, opt.get('bias', 64.0))
    K.e(f'{name}_att:')
    K.e(qk(0, F[1], v(NM[0], 16)))
    for h in range(2):
        for i in range(16): K.e(f'v_mov_b32 v{O[h]+i}, 0')
        for i in range(4): K.e(f'v_mov_b32 v{L[h]+i}, 0')
    K.e(f's_mov_b32 s43, 0\nv_mov_b32 v{VRD}, v{VB2}')
    K.e(f's_lshl_b32 s57, s3, 14\ns_lshl_b32 s58, s10, 2\ns_add_u32 s58, s58, s3\ns_mul_i32 s58, s58, {64*7168}\ns_lshl_b32 s16, s11, 8\ns_add_u32 s58, s58, s16')
    K.e('@waitvm R0\ns_barrier')
    if opt.get('stamp'): stamp(K, 2); K.e('@waitlg all')
    def freads(fb, off): return [f'ds_read_b128 {fr(fb+4*i,4)}, v{VRD} offset:{off+1024*i}' for i in (2, 0, 3, 1)]
    K.e(freads(F[0], 0))
    UN = opt.get('un', 1)
    pre = spread(qk(1, F[1], v(NM[1], 16)), ex(0)[:-4])
    pre[1].insert(1, '@waitlg all')
    K.e(flatten(pre))
    def order(q, p, l):
        d = dict(q=list(q), p=list(p), l=list(l))
        return [d[c].pop(0) for c in opt.get('ord', 'qplqpl')]
    def loop(lab, n, slab, vmw):
        K.e(f's_mov_b32 s18, {n // UN}')
        K.e(f'@save {lab}\n@loophead {lab}\n.p2align 6\n{name}_{lab}:')
        sl = []; gap = {}
        def put(g, x):
            assert g not in gap, (g, x, gap[g])
            gap[g] = x
        for sg in range(UN):
            for u in range(4):
                fb = F[u & 1]; nb = F[1 - (u & 1)]; g0 = len(sl)
                sl += spread(order(qk(0, fb, v(NM[0], 16)), pv(0, fb), ls(0)), ex(1)) + spread(order(qk(1, fb, v(NM[1], 16)), pv(1, fb), ls(1)), ex(0))
                last = sg == UN - 1
                if u < 3:
                    for k, x in enumerate(freads(nb, 16384 * sg + 4096 * (u + 1))): put(g0 + 1 + k, x)
                else:
                    put(g0, f's_waitcnt vmcnt({vmw})'); put(g0 + 1, 's_barrier')
                    for k, x in enumerate(freads(nb, 0 if last else 16384 * (sg + 1))): put(g0 + 2 + k, x)
                    for k in range(4): put(g0 + 6 + k, f'buffer_load_dwordx4 v{VL}, s[28:31], s42 offen offset:{1024*k} lds')
                put(g0 + 10, '@waitlg all')
                if u == 2:
                    put(g0 + 5, 's_add_u32 s42, s42, 16384')
                    if UN == 4: put(g0 + 6, f's_add_u32 m0, s56, {16384*sg}')
                    else:
                        put(g0 + 6, 's_add_u32 m0, s43, s56'); put(g0 + 7, 's_add_u32 s43, s43, 16384'); put(g0 + 8, 's_and_b32 s43, s43, 0xffff')
                        if last: sl[g0 + 9].append(f'v_add_u32 v{VRD}, s43, v{VB2}')
                    if last: put(g0 + 9, 's_sub_u32 s18, s18, 1'); put(g0 + 11, 's_cmp_lg_u32 s18, 0')
                if slab and u == 0:
                    put(g0 + 5, 's_mov_b32 m0, s57'); put(g0 + 6, 's_add_u32 s57, s57, 2048')
                    put(g0 + 7, f'buffer_load_dwordx4 v{VS0}, s[32:35], s58 offen lds')
                    put(g0 + 8, f'buffer_load_dwordx4 v{VS0+1}, s[32:35], s58 offen offset:1024 lds')
                    put(g0 + 9, f's_add_u32 s58, s58, {8*7168}')
        for g, x in gap.items(): sl[g].insert(1, x)
        tail = sl[-1][1:]; assert len(tail) == 4
        K.e(tail); K.e(flatten(sl)[:-4])
        K.e(f's_cbranch_scc1 {name}_{lab}\n@check {lab} lg\n@loopend {lab}')
    loop('l1', 8, True, 10)
    for st in range(8):
        for tt in range(2): K.e(f'buffer_load_dwordx2 {a(4*st+2*tt,2)}, v{VM}, s[44:47], 0 offen offset:{64*st+32*tt}')
    loop('l2', 8, False, 8)
    if opt.get('stamp'): stamp(K, 3)
    K.e(f's_mov_b32 s16, {f2h(2.0**60)}')
    K.e(f'v_cmp_nle_f32 vcc, v{L[0]}, s16\nv_cmp_nle_f32 s[20:21], v{L[1]}, s16\ns_or_b64 vcc, vcc, s[20:21]')
    K.e(f's_cmp_lg_u64 vcc, 0\ns_cselect_b32 s16, 1, 0\nv_mov_b32 v1, s16\ns_lshl_b32 s16, s3, 2\ns_add_u32 s16, s16, {FLAG}\nv_mov_b32 v2, s16')
    K.e('ds_write_b32 v2, v1')
    for st in range(8):
        for e in range(2):
            for tt in range(2): K.e(f'ds_read_b64_tr_b16 {a(32+8*st+4*e+2*tt,2)}, v{VU+e} offset:{8192*st+4096*tt}')
    K.e('s_lshl_b32 s16, s15, 15\ns_lshl_b32 s17, s13, 11\ns_add_u32 s16, s16, s17')
    for h in range(2):
        K.e(f'v_rcp_f32 v4, v{L[h]}\ns_nop 0\nv_mov_b32 v5, v4')
        for hh in range(2):
            o = O[h] + 8 * hh
            for j in range(0, 8, 2): K.e(f'v_pk_mul_f32 {v(o+j,2)}, {v(o+j,2)}, v[4:5]')
            for j in range(0, 8, 2): K.e(f'v_cvt_pk_bf16_f32 v{o+j//2}, v{o+j}, v{o+j+1}')
            K.e(f'buffer_store_dwordx4 {v(o,4)}, v{VO}, s[36:39], s16 offen offset:{1024*h+512*hh}')
    K.e(f'v_mov_b32 v2, {FLAG}')
    K.e('@waitlg all\ns_barrier')
    K.e('ds_read_b128 v[4:7], v2')
    K.e(f's_cmp_ge_u32 s2, 224\ns_cbranch_scc1 {name}_nout')
    K.e('@save c')
    for st in range(8):
        for e in range(2): K.e(f'{MF} {v(8+4*e,4)}, {a(4*st,4)}, {a(32+8*st+4*e,4)}, ' + ('0' if st == 0 else v(8+4*e,4)))
    K.e('s_lshl_b32 s16, s11, 3\ns_lshl_b32 s17, s3, 1\ns_add_u32 s16, s16, s17\ns_lshl_b32 s16, s16, 10\ns_lshl_b32 s17, s10, 8\ns_add_u32 s16, s16, s17\ns_add_u32 s16, s16, s12')
    for e in range(2):
        b = 8 + 4 * e
        K.e(f'v_cvt_pk_bf16_f32 v{b+2}, v{b}, v{b+1}\nv_and_b32 v{b}, 0xffff0000, v{b+2}\nv_sub_f32 v{b+1}, v{b+1}, v{b}\nv_cvt_pk_bf16_f32 v{b+3}, v{b+1}, v{b}')
    K.e('s_mov_b64 exec, 0xffff')
    for e in range(2): K.e(f'buffer_store_dwordx2 {v(10+4*e,2)}, v{VL}, s[48:51], s16 offen offset:{1024*e}')
    K.e('s_mov_b64 exec, -1')
    K.e(f'{name}_nout:\n@restore c')
    K.e('v_or3_b32 v4, v4, v5, v6\nv_or_b32 v4, v4, v7\nv_readfirstlane_b32 s16, v4')
    K.e(f's_cmp_gt_u32 s16, s19\ns_cbranch_scc1 {name}_fb')
    if opt.get('stamp'):
        K.e('@waitall'); stamp(K, 4); dump_stamps(K, 5, 8)
    K.e('s_endpgm')
    K.e(f'{name}_fb:\n@clear\n@hzreset\ns_waitcnt vmcnt(0) lgkmcnt(0)')
    K.e('s_mov_b32 s19, 1\ns_mov_b32 s18, 0\nv_mov_b32 v1, 0xff800000\nv_mov_b32 v2, 0xff800000')
    K.e(f'@save fb\n@loophead fb\n{name}_fbl:')
    for b in range(2): K.e(f'buffer_load_dwordx4 {fr(F[1]+8+4*b,4)}, v{VL}, s[28:31], s18 offen offset:{1024*b}')
    K.e([a0[0], b0[0], a0[1], b0[1]])
    for h in range(2): K.e(rowmax(h, 1 + h, False))
    K.e(f's_add_u32 s18, s18, 4096\ns_cmp_lt_u32 s18, 0x40000\ns_cbranch_scc1 {name}_fbl\n@check fb\n@loopend fb')
    for h in range(2): bcast(h, 1 + h, 0.0)
    K.e(flatten(ring_pro()))
    K.e(f'@waitall\ns_nop 1\ns_branch {name}_att')
    finish(K)
    return K, (name, 256, 256, FLAG + 16)
if __name__ == '__main__':
    from mk import onefile
    onefile('k3a.s', [build_k3(opt=dict(stamp=1))])
    onefile('k3b.s', [build_k3(opt=dict(stamp=1, un=2))])
    onefile('k3c.s', [build_k3(opt=dict(stamp=1, un=4))])
    onefile('k3d.s', [build_k3(opt=dict(stamp=1, un=4, fa=1))])
    onefile('k3e.s', [build_k3(opt=dict(stamp=1, un=2, ord='qpqlpl'))])
    onefile('k3f.s', [build_k3(opt=dict(stamp=1, un=2, ord='qlpqlp'))])
```

```python
from gemm64 import *

def tile_ids(K):
    K.e('v_lshrrev_b32 v1, 6, v0\nv_readfirstlane_b32 s3, v1\nv_and_b32 v0, 63, v0')
    K.e('s_and_b32 s10, s2, 7\ns_lshr_b32 s11, s2, 3')
    K.e('s_lshr_b32 s12, s10, 1\ns_lshl_b32 s12, s12, 2\ns_and_b32 s13, s11, 3\ns_add_u32 s12, s12, s13')
    K.e('s_and_b32 s13, s10, 1\ns_lshl_b32 s13, s13, 3\ns_lshr_b32 s14, s11, 2\ns_add_u32 s13, s13, s14')
    K.e('s_lshl_b32 s14, s13, 7')
    K.e('s_lshl_b32 s15, s12, 3\ns_lshl_b32 s16, s3, 1\ns_add_u32 s15, s15, s16')

def unpack(dst, src):
    return [f'v_lshlrev_b32 v{dst}, 16, v{src}', f'v_and_b32 v{dst+1}, 0xffff0000, v{src}']

def build_k46(which, name=None, NS=4, R=16, opt=None):
    opt = opt or {}
    down = which == 6
    name = name or f'k{which}_kernel'
    K = Kernel(name)
    guard(K, opt.get('nwg', 256))
    if opt.get('stamp'): stamp(K, 0)
    K.e(f's_load_dwordx2 s[4:5], s[0:1], {KA["wd" if down else "wo"]}')
    K.e(f's_load_dwordx2 s[6:7], s[0:1], {KA["out" if down else "x"]}')
    K.e(f's_load_dwordx2 s[8:9], s[0:1], {KA["ws"]}')
    tile_ids(K)
    nsteps = 112 if down else 32
    regs = dict(acc=4, vd=36, vb=40, vt=42, aa=0, ab=32, nodma=opt.get('nodma'), nob=opt.get('nob'))
    G = G64(K, nsteps, 'p16' if down else 'om', regs, NS=NS, R=R)
    G.setup(0, 3, 14, 15, 1, 2)
    srd(K, 20, 4, 0, nsteps * 32 * 2048)
    srd(K, 24, 8, WS_HH if down else WS_O, 128 * nsteps * 1024)
    G.prologue(opt.get('pro', 2))
    VX = 52
    VG = 68
    VC = 84
    VA = 50; VA2 = 51
    srd(K, 28, 6, 0, 2048 * 2048)
    srd(K, 32, 8, WS_MOD, 6144 * 4)
    srd(K, 36, 8, WS_X1, 0x400000)
    pre = []
    pre += [f'v_and_b32 v1, 15, v0', 'v_lshlrev_b32 v1, 11, v1', 'v_bfe_u32 v2, v0, 4, 1', 'v_lshl_add_u32 v1, v2, 5, v1',
            'v_lshrrev_b32 v2, 5, v0', 'v_lshl_add_u32 v1, v2, 4, v1', 's_lshl_b32 s18, s15, 15', 's_add_u32 s18, s18, s14',
            f'v_add_u32 v{VA}, s18, v1', 's_mov_b32 s42, 32768',
            's_lshl_b32 s18, s15, 15', 's_lshl_b32 s19, s13, 11', 's_add_u32 s18, s18, s19', f'v_lshl_add_u32 v{VA2}, v0, 4, s18',
            'v_lshrrev_b32 v2, 4, v0', 'v_lshlrev_b32 v2, 4, v2', 's_lshl_b32 s19, s14, 1', 'v_add_u32 v3, s19, v2']
    ld = []
    for nt in range(2):
        for aa in range(2):
            so = 's42' if nt else '0'
            if down: ld.append(f'buffer_load_dwordx4 {v(VX + 8*nt + 4*aa, 4)}, v{VA2}, s[36:39], {so} offen offset:{1024*aa}')
            else:    ld.append(f'buffer_load_dwordx4 {v(VX + 8*nt + 4*aa, 4)}, v{VA}, s[28:31], {so} offen offset:{64*aa}')
    pre.append('s_mov_b32 s43, %d' % ((5 if down else 2) * 4096))
    for mt in range(4): ld.append(f'buffer_load_dwordx4 {v(VG + 4*mt, 4)}, v3, s[32:35], s43 offen offset:{64*mt}')
    if not down:
        pre.append('s_mov_b32 s44, %d' % (4 * 4096))
        for mt in range(4): ld.append(f'buffer_load_dwordx4 {v(VC + 4*mt, 4)}, v3, s[32:35], s44 offen offset:{64*mt}')
    K.e(pre)
    side = {}
    t0 = nsteps - 20
    for i, l in enumerate(ld): side[t0 + i] = [l]
    if opt.get('stamp'): K.e('@waitvm W0'); stamp(K, 1)
    G.main(side, maxper=opt.get('maxper', 5))
    if opt.get('stamp'): stamp(K, 2)
    T = 100
    if down:
        for nt in range(2):
            for aa in range(2):
                X = VX + 8 * nt + 4 * aa
                for e in range(2):
                    mt = 2 * aa + e; A0 = G.acc(mt, nt)
                    K.e(unpack(T, X + 2 * e) + unpack(T + 2, X + 2 * e + 1))
                    for j in (0, 2): K.e(f'v_pk_fma_f32 {v(A0+j,2)}, {v(A0+j,2)}, {v(VG+4*mt+j,2)}, {v(T+j,2)}')
                    K.e(f'v_cvt_pk_bf16_f32 v{X+2*e}, v{A0}, v{A0+1}\nv_cvt_pk_bf16_f32 v{X+2*e+1}, v{A0+2}, v{A0+3}')
                K.e(f'v_permlane16_swap_b32 v{X}, v{X+2}\nv_permlane16_swap_b32 v{X+1}, v{X+3}')
                so = 's42' if nt else '0'
                K.e(f'buffer_store_dwordx4 {v(X,4)}, v{VA}, s[28:31], {so} offen offset:{64*aa}')
    else:
        srd(K, 44, 8, WS_X1S, 0x400000)
        srd(K, 48, 8, WS_STATS, 128 * 16 * 128)
        S = 108
        P = 116
        for nt in range(2):
            for aa in range(2):
                X = VX + 8 * nt + 4 * aa; PP = P + 4 * aa
                K.e(f'v_permlane16_swap_b32 v{X}, v{X+2}\nv_permlane16_swap_b32 v{X+1}, v{X+3}')
                for e in range(2):
                    mt = 2 * aa + e; A0 = G.acc(mt, nt)
                    K.e(unpack(T, X + 2 * e) + unpack(T + 2, X + 2 * e + 1))
                    for j in (0, 2): K.e(f'v_pk_fma_f32 {v(A0+j,2)}, {v(A0+j,2)}, {v(VG+4*mt+j,2)}, {v(T+j,2)}')
                    K.e(f'v_cvt_pk_bf16_f32 v{X+2*e}, v{A0}, v{A0+1}\nv_cvt_pk_bf16_f32 v{X+2*e+1}, v{A0+2}, v{A0+3}')
                    for j in (0, 2):
                        if mt == 0 and j == 0:
                            K.e(f'v_mov_b32 v{S+4*nt}, v{A0}\nv_mov_b32 v{S+4*nt+1}, v{A0+1}')
                            K.e(f'v_pk_mul_f32 {v(S+4*nt+2,2)}, {v(A0,2)}, {v(A0,2)}')
                        else:
                            K.e(f'v_pk_add_f32 {v(S+4*nt,2)}, {v(S+4*nt,2)}, {v(A0+j,2)}')
                            K.e(f'v_pk_fma_f32 {v(S+4*nt+2,2)}, {v(A0+j,2)}, {v(A0+j,2)}, {v(S+4*nt+2,2)}')
                        K.e(f'v_pk_mul_f32 {v(T+j,2)}, {v(A0+j,2)}, {v(VC+4*mt+j,2)}')
                    K.e(f'v_cvt_pk_bf16_f32 v{PP+2*e}, v{T}, v{T+1}\nv_cvt_pk_bf16_f32 v{PP+2*e+1}, v{T+2}, v{T+3}')
                so = 's42' if nt else '0'
                K.e(f'buffer_store_dwordx4 {v(PP,4)}, v{VA2}, s[44:47], {so} offen offset:{1024*aa}')
                K.e(f'buffer_store_dwordx4 {v(X,4)}, v{VA2}, s[36:39], {so} offen offset:{1024*aa}')
        for nt in range(2):
            K.e(f'v_add_f32 v{S+4*nt}, v{S+4*nt}, v{S+4*nt+1}\nv_add_f32 v{S+4*nt+1}, v{S+4*nt+2}, v{S+4*nt+3}')
        K.e(f'v_permlane32_swap_b32 v{S}, v{S+4}\nv_permlane32_swap_b32 v{S+1}, v{S+5}')
        K.e(f'v_add_f32 v{S}, v{S}, v{S+4}\nv_add_f32 v{S+1}, v{S+1}, v{S+5}')
        K.e(f'v_mov_b32 v{S+2}, v{S}\nv_mov_b32 v{S+3}, v{S+1}')
        K.e(f'v_permlane16_swap_b32 v{S}, v{S+2}\nv_permlane16_swap_b32 v{S+1}, v{S+3}')
        K.e(f'v_add_f32 v{S}, v{S}, v{S+2}\nv_add_f32 v{S+1}, v{S+1}, v{S+3}')
        K.e('v_and_b32 v1, 15, v0\nv_lshlrev_b32 v1, 3, v1\nv_lshrrev_b32 v2, 5, v0\nv_lshl_add_u32 v1, v2, 11, v1')
        K.e('v_bfe_u32 v2, v0, 4, 1\nv_lshl_add_u32 v1, v2, 30, v1')
        K.e('s_lshl_b32 s18, s15, 11\ns_lshl_b32 s19, s13, 7\ns_add_u32 s18, s18, s19')
        K.e(f'buffer_store_dwordx2 {v(S,2)}, v1, s[48:51], s18 offen')
    if opt.get('stamp'):
        stamp(K, 3); K.e('@waitall'); stamp(K, 4); dump_stamps(K, 5, 8, opt.get('kidx', 0))
    finish(K)
    return K, (name, 256, 256, NS * 16384)
```

```python
from common import *
MF = 'v_mfma_f32_16x16x32_bf16'
def build_k5(name='k5_kernel', NS=5, R=8, opt=None):
    opt = opt or {}
    K = Kernel(name)
    STG = 28672; UPO = 14336
    NST = 16
    VD = 224
    VB = 231
    VT = 235
    VS = 238
    VR = 248
    AA = 0
    AB = 56
    AX = AB + 16 * R
    AU = AX + 8
    def acc(up, i, nt): return 4 * ((7 * up + i) * 4 + nt)
    guard(K, 256)
    if opt.get('stamp'): stamp(K, 0)
    K.e(f's_load_dwordx4 s[4:7], s[0:1], {KA["wg"]}')
    K.e(f's_load_dwordx2 s[8:9], s[0:1], {KA["ws"]}')
    K.e('v_lshrrev_b32 v1, 6, v0')
    K.e('v_readfirstlane_b32 s3, v1')
    K.e('v_and_b32 v0, 63, v0')
    K.e('s_and_b32 s10, s2, 7')
    K.e('s_lshr_b32 s11, s2, 3')
    K.e('s_and_b32 s12, s10, 1\ns_lshl_b32 s12, s12, 2\ns_and_b32 s13, s11, 3\ns_add_u32 s12, s12, s13')
    K.e('s_lshr_b32 s13, s10, 1\ns_lshl_b32 s13, s13, 3\ns_lshr_b32 s14, s11, 2\ns_add_u32 s13, s13, s14')
    K.e('s_and_b32 s14, s3, 1\ns_mul_i32 s14, s14, %d\ns_mul_i32 s15, s13, 224\ns_add_u32 s14, s14, s15' % (32 * 7168))
    K.e('s_mov_b32 s15, 0x124a\ns_mov_b32 s16, 7168\ns_and_b32 s19, s13, 1\ns_lshl_b32 s18, s19, 1')
    for i in range(7):
        K.e(f'v_add_u32 v1, {64*i}, v0')
        K.e('v_mul_lo_u32 v2, v1, s15\nv_lshrrev_b32 v2, 16, v2')
        K.e('v_mul_u32_u24 v3, 14, v2\nv_sub_u32 v1, v1, v3\nv_add_u32 v1, s18, v1')
        K.e('v_subrev_u32 v3, 14, v1\nv_min_u32 v1, v1, v3')
        K.e('v_mul_lo_u32 v2, v2, s16\nv_lshl_add_u32 v1, v1, 4, v2')
        K.e(f'v_add_u32 v{VD+i}, s14, v1')
        if i % 4: K.e(f'v_subrev_u32 v{VD+i}, {1024*(i%4)}, v{VD+i}')
    K.e('s_lshl_b32 s15, s12, 4\ns_lshl_b32 s16, s3, 2\ns_add_u32 s15, s15, s16')
    K.e('s_lshl_b32 s16, s15, 15')
    K.e(f'v_lshl_add_u32 v{VB}, v0, 4, s16')
    for nt in range(1, 4): K.e(f'v_add_u32 v{VB+nt}, {nt * 0x8000}, v{VB}')
    if opt.get('om'): K.e('v_bfe_u32 v2, v0, 2, 3\nv_lshrrev_b32 v3, 5, v0\nv_lshl_add_u32 v2, v3, 4, v2\nv_mul_u32_u24 v2, 224, v2')
    else: K.e('v_lshrrev_b32 v2, 2, v0\nv_mul_u32_u24 v2, 224, v2')
    K.e(f'v_and_b32 v3, 3, v0\nv_lshl_add_u32 v{VT}, v3, 3, v2')
    K.e(f'v_add_u32 v{VT+1}, {2*STG}, v{VT}\nv_add_u32 v{VT+2}, {4*STG}, v{VT}')
    K.e('s_cmp_ge_u32 s3, 2\ns_cselect_b32 s20, s6, s4\ns_cselect_b32 s21, s7, s5')
    K.e('s_mov_b32 s22, %d\ns_mov_b32 s23, 0x00020000' % (1024 * 7168))
    srd(K, 24, 8, WS_X1S, 0x400000)
    K.e('s_mul_i32 s17, s3, 7168')
    SW = 40; SB = 41
    K.e(f's_mov_b32 m0, s17\ns_mov_b32 s{SW}, 0\ns_mov_b32 s{SB}, 0')
    def dma(st):
        L = []; slot = st % NS
        for i in range(7):
            off = f' offset:{1024*(i%4)}' if i % 4 else ''
            g = [(f'buffer_load_dwordx4 v{VD+i}, s[20:23], s{SW} offen{off} lds', f'W{st}')]
            if i == 3: g.append(f's_add_u32 m0, s17, {slot*STG + 4096}')
            if i == 6: g += [f's_add_u32 s{SW}, s{SW}, {64*7168}', f's_add_u32 m0, s17, {((st+1)%NS)*STG}']
            L.append(g)
        return L
    def bload(T):
        L = []
        for nt in range(4):
            off = f' offset:{1024*(T%4)}' if T % 4 else ''
            g = [f'buffer_load_dwordx4 {a(AB + 16*(T%R) + 4*nt, 4)}, v{VB+nt}, s[24:27], s{SB} offen{off}']
            if nt == 3 and T % 4 == 3: g.append(f's_add_u32 s{SB}, s{SB}, 4096')
            L.append(g)
        return L
    def areads(t):
        st = t // 4; slot = st % NS; up = t % 2; L = []
        for i in range(7):
            for tt in range(2):
                off = (slot % 2) * STG + up * UPO + (32 * ((t // 2) % 2) + (8 if opt.get('om') else 16) * tt) * 224 + 32 * i
                L.append(f'ds_read_b64_tr_b16 {a(AA + 28*up + 4*i + 2*tt, 2)}, v{VT + slot//2} offset:{off}')
        return L
    Q = []
    for st in range(NST):
        for g in dma(st): Q.append((4 * st - 1, 4 * (st - NS) + 3 if st >= NS else -1, g))
        for T in (2 * st, 2 * st + 1):
            for g in bload(T): Q.append((2 * T, 2 * (T - R + 1) if T >= R else -1, g))
    for _ in range(15 * opt.get('pro', 2)): K.e(Q.pop(0)[2])
    srd(K, 28, 8, WS_HH, 128 * 112 * 1024)
    srd(K, 32, 8, WS_STATS, 128 * 16 * 128)
    srd(K, 36, 8, WS_UTF, 224 * 1024)
    K.e(f'v_lshrrev_b32 v1, 4, v0\nv_and_b32 v2, 15, v0\nv_lshlrev_b32 v2, 3, v2\nv_lshl_add_u32 v{VS+8}, v1, 9, v2')
    K.e('s_lshl_b32 s42, s15, 11')
    K.e('s_mul_i32 s43, s13, 7\ns_add_u32 s44, s43, s19\ns_lshl_b32 s45, s44, 10')
    K.e('s_cmp_eq_u32 s19, 0\ns_cselect_b32 s46, 6, 0\ns_add_u32 s46, s46, s43\ns_lshl_b32 s47, s46, 10')
    K.e('@waitvm W0\ns_barrier')
    if opt.get('stamp'): stamp(K, 1)
    K.e(areads(0))
    def stats_loads(nt):
        L = [f'buffer_load_dwordx2 {v(VS+2*i, 2)}, v{VS+8}, s[32:35], s42 offen offset:{128*i}' for i in range(4)]
        return L + ['s_add_u32 s42, s42, 2048']
    def stats_math(nt):
        return [f'v_add_f32 v{VS}, v{VS}, v{VS+2}', f'v_add_f32 v{VS+1}, v{VS+1}, v{VS+3}',
              f'v_add_f32 v{VS+4}, v{VS+4}, v{VS+6}', f'v_add_f32 v{VS+5}, v{VS+5}, v{VS+7}',
              f'v_add_f32 v{VS}, v{VS}, v{VS+4}', f'v_add_f32 v{VS+1}, v{VS+1}, v{VS+5}',
              f'v_mov_b32 v{VS+2}, v{VS}', f'v_mov_b32 v{VS+3}, v{VS+1}',
              f'v_permlane32_swap_b32 v{VS}, v{VS+2}', f'v_permlane32_swap_b32 v{VS+1}, v{VS+3}',
              f'v_add_f32 v{VS}, v{VS}, v{VS+2}', f'v_add_f32 v{VS+1}, v{VS+1}, v{VS+3}',
              f'v_mov_b32 v{VS+2}, v{VS}', f'v_mov_b32 v{VS+3}, v{VS+1}',
              f'v_permlane16_swap_b32 v{VS}, v{VS+2}', f'v_permlane16_swap_b32 v{VS+1}, v{VS+3}',
              f'v_add_f32 v{VS}, v{VS}, v{VS+2}', f'v_add_f32 v{VS+1}, v{VS+1}, v{VS+3}',
              f'v_mul_f32 v{VS}, {f2h(-1.0/1024)}, v{VS}',
              f'v_mul_f32 v{VS+1}, {f2h(1.0/1024)}, v{VS+1}',
              f'v_fma_f32 v{VS+1}, -v{VS}, v{VS}, v{VS+1}',
              f'v_max_f32 v{VS+1}, 0, v{VS+1}',
              f'v_add_f32 v{VS+1}, {f2h(1e-5)}, v{VS+1}',
              f'v_sqrt_f32 v{VR+4+nt}, v{VS+1}', f'v_rsq_f32 v{VR+nt}, v{VS+1}',
              f'v_cvt_pk_bf16_f32 v{VS+2}, v{VS}, v{VR+4+nt}',
              f'v_mul_f32 v{VR+nt}, {f2h(-LOG2E)}, v{VR+nt}',
              f'v_and_b32 v{VS+3}, 0xffff0000, v{VS+2}',
              f'v_sub_f32 v{VS+4}, v{VR+4+nt}, v{VS+3}',
              f'v_cvt_pk_bf16_f32 v{VS+3}, v{VS+3}, v{VS+4}',
              f'v_accvgpr_write_b32 a{AX+2*nt}, v{VS+2}', f'v_accvgpr_write_b32 a{AX+2*nt+1}, v{VS+3}']
    def ut_loads():
        L = [f'v_and_b32 v{VS}, 0x3f0, v{VB}']
        for i in range(6):
            if i == 4: L.append('s_add_u32 s45, s45, 4096')
            L.append(f'buffer_load_dwordx4 {a(AU+4*i, 4)}, v{VS}, s[36:39], s45 offen offset:{1024*(i%4)}')
        L.append(f'buffer_load_dwordx4 {a(AU+24, 4)}, v{VS}, s[36:39], s47 offen')
        return L
    side = {}
    for nt in range(4):
        side[4 + 12 * nt] = stats_loads(nt)
        m = stats_math(nt)
        for k in range(3): side[4 + 12 * nt + 9 + k] = m[11 * k: 11 * k + 11]
    side[52] = ut_loads()
    T2 = 4 * NST
    maxper = opt.get('maxper', 6)
    for t in range(T2):
        st, ks = t // 4, t % 4; up = t % 2; T = t // 2
        slots = []
        for i in range(7):
            for k in range(4):
                nt = k if i % 2 == 0 else 3 - k
                d = v(acc(up, i, nt), 4); c = '0' if t < 2 else d
                slots.append([f'{MF} {d}, {a(AA + 28*up + 4*i, 4)}, {a(AB + 16*(T%R) + 4*nt, 4)}, {c}'])
        pre = []
        if ks == 3 and st + 1 < NST: pre = ['@waitlg all', f'@waitvm W{st+1}', 's_barrier']
        if t + 1 < T2: interleave(slots, areads(t + 1), 0, 1, 2)
        vm = []
        while Q and len(vm) < maxper and Q[0][1] <= t: vm.append(Q.pop(0)[2])
        if vm: interleave(slots, vm, 1, 1, 2 * max(1, 14 // len(vm)))
        if t in side: interleave(slots, side[t], 3, 1, 2)
        K.e(pre); K.e(flatten(slots))
    assert not Q
    if opt.get('stamp'): stamp(K, 2)
    for i in range(7):
        for up in range(2):
            for nt in range(4):
                d = v(acc(up, i, nt), 4)
                K.e(f'v_mfma_f32_16x16x16_bf16 {d}, {a(AU + 4*i + 2*up, 2)}, {a(AX + 2*nt, 2)}, {d}')
    K.e(f's_mul_i32 s42, s15, {112*1024}\ns_lshl_b32 s44, s44, 9\ns_add_u32 s44, s44, s42')
    K.e(f's_lshr_b32 s46, s46, 1\ns_lshl_b32 s46, s46, 10\ns_add_u32 s46, s46, s42\ns_lshl_b32 s19, s19, 3\ns_add_u32 s46, s46, s19')
    K.e(f'v_and_b32 v{VD}, 0x3f0, v{VB}')
    for nt in range(1, 4): K.e(f'v_add_u32 v{VD+nt}, {nt*112*1024}, v{VD}')
    for i in range(7):
        for nt in range(4):
            G0 = acc(0, i, nt); U0 = acc(1, i, nt)
            pr = VR + (nt & ~1); sl = nt & 1
            for j in (0, 2): K.e(f'v_pk_mul_f32 {v(G0+j,2)}, {v(G0+j,2)}, {v(pr,2)} op_sel:[0,{sl}] op_sel_hi:[1,{sl}]')
            for j in range(4): K.e(f'v_exp_f32 v{G0+j}, v{G0+j}')
            for j in (0, 2): K.e(f'v_pk_fma_f32 {v(G0+j,2)}, {v(G0+j,2)}, {v(pr+4,2)}, {v(pr+4,2)} op_sel:[0,{sl},{sl}] op_sel_hi:[1,{sl},{sl}]')
            for j in range(4): K.e(f'v_rcp_f32 v{G0+j}, v{G0+j}')
            for j in (0, 2): K.e(f'v_pk_mul_f32 {v(G0+j,2)}, {v(G0+j,2)}, {v(U0+j,2)}')
            P = acc(1, i & ~1, nt) + 2 * (i & 1)
            K.e(f'v_cvt_pk_bf16_f32 v{P}, v{G0}, v{G0+1}\nv_cvt_pk_bf16_f32 v{P+1}, v{G0+2}, v{G0+3}')
            if i & 1: K.e(f'buffer_store_dwordx4 {v(P-2,4)}, v{VD+nt}, s[28:31], s44 offen offset:{1024*(i//2)}' + opt.get('stflag', ''))
            if i == 6: K.e(f'buffer_store_dwordx2 {v(P,2)}, v{VD+nt}, s[28:31], s46 offen' + opt.get('stflag', ''))
    if opt.get('stamp'):
        stamp(K, 3); K.e('@waitall'); stamp(K, 4); dump_stamps(K, 5, 8, opt.get('kidx', 0))
    finish(K)
    return K, (name, 256, 256, NS * STG)
```

```python
import sys
from common import *
def onefile(path, parts):
    ks = [p[0] for p in parts]; ls = [p[1] for p in parts]
    t = wrap_file(HEADER, ks, ls)
    open(path, 'w').write(t)
    for k in ks: print(k.name, 'regs', k.maxregs(), 'nops', k.nnops, 'ins', len(k.ins), 'pad', getattr(k, 'npad', 0), 'wide', getattr(k, 'nwide', 0))
    return t
```

```python
import sys
from mk import onefile
from k1 import build_k1
from k2 import build_k2
from k3 import build_k3
from k46 import build_k46
from k5 import build_k5
from common import NAME
def full(path, o=None):
    o = o or {}
    st = dict(stamp=1) if o.get('stamp') else {}
    parts = [build_k1(opt=dict(st, **o.get('k1', {}))), build_k2(opt=dict(st, **o.get('k2', {}))), build_k3(opt=dict(st, un=2, **o.get('k3', {}))),
             build_k46(4, opt=dict(st, **o.get('k4', {}))), build_k5(NS=4, R=6, opt=dict(st, **o.get('k5', {}))), build_k46(6, opt=dict(st, **o.get('k6', {})))]
    return onefile(path, parts)
if __name__ == '__main__':
    t = full('cdna_kernels/' + NAME + '.s')
    print(len(t))
```

```python
import re

def v(i, n=1): return f'v{i}' if n == 1 else f'v[{i}:{i+n-1}]'
def a(i, n=1): return f'a{i}' if n == 1 else f'a[{i}:{i+n-1}]'
def s(i, n=1): return f's{i}' if n == 1 else f's[{i}:{i+n-1}]'

_reg = re.compile(r'^(-|\|)?(abs\()?([vas])(\d+|\[(\d+):(\d+)\])\)?\|?$')
def regs_of(tok):
    tok = tok.strip()
    if tok in ('vcc',): return {('s', 106), ('s', 107)}
    if tok == 'vcc_lo': return {('s', 106)}
    if tok == 'vcc_hi': return {('s', 107)}
    if tok == 'exec': return {('s', 126), ('s', 127)}
    if tok == 'exec_lo': return {('s', 126)}
    if tok == 'exec_hi': return {('s', 127)}
    if tok == 'm0': return {('s', 124)}
    m = _reg.match(tok)
    if not m: return set()
    c = m.group(3)
    if m.group(5) is not None:
        return {(c, i) for i in range(int(m.group(5)), int(m.group(6)) + 1)}
    return {(c, int(m.group(4)))}

TRANS = ('v_exp_f32', 'v_log_f32', 'v_rcp_f32', 'v_rsq_f32', 'v_sqrt_f32', 'v_sin_f32', 'v_cos_f32')
VCC = {('s', 106), ('s', 107)}
EXEC = {('s', 126), ('s', 127)}
M0 = {('s', 124)}
DPPW = ('row_shr', 'row_shl', 'row_ror', 'quad_perm', 'row_mirror', 'row_half_mirror', 'row_bcast', 'row_newbcast', 'wave_')

class Ins:
    __slots__ = ('text', 'op', 'defs', 'uses', 'kind', 'tag', 'passes', 'A', 'B', 'C', 'dpp', 'wide', 'lds', 'pseudo', 'arg')
    def __init__(self, text, tag=None):
        self.text = text; self.tag = tag
        self.defs = set(); self.uses = set(); self.kind = 'other'; self.passes = 0
        self.A = self.B = self.C = set(); self.dpp = False; self.wide = False; self.lds = False
        self.pseudo = None; self.arg = None
        t = text.split(';')[0].strip()
        if t.startswith('@'):
            p = t[1:].split(None, 1); self.pseudo = p[0]; self.arg = p[1] if len(p) > 1 else None
            self.op = '@'; self.kind = 'pseudo'; return
        if t.endswith(':') or t.startswith('.') or not t:
            self.op = t; self.kind = 'label' if t.endswith(':') else 'dir'; return
        p = t.split(None, 1); op = p[0]; self.op = op
        rest = p[1] if len(p) > 1 else ''
        ops = []; cur = ''; d = 0
        for ch in rest:
            if ch == '[': d += 1
            if ch == ']': d -= 1
            if ch == ',' and d == 0: ops.append(cur.strip()); cur = ''
            else: cur += ch
        ops.append(cur.strip())
        mods = ''
        if ops and ' ' in ops[-1]:
            q = ops[-1].split(None, 1); ops[-1] = q[0]; mods = q[1]
        R = [regs_of(o) for o in ops]
        base = op.replace('_e32', '').replace('_e64', '').replace('_dpp', '').replace('_sdwa', '')
        if op.startswith('v_mfma'):
            self.kind = 'mfma'; self.defs = R[0]; self.A, self.B, self.C = R[1], R[2], R[3]
            self.uses = R[1] | R[2] | R[3]
            self.passes = 8 if '32x32x16' in op else 4 if ('16x16x32' in op or '16x16x16' in op) else None
            assert self.passes
        elif op.startswith('v_'):
            self.kind = 'valu'
            self.defs = set(R[0]); self.uses = set().union(*R[1:]) if len(R) > 1 else set()
            if base.startswith('v_permlane') and 'swap' in base:
                self.defs = R[0] | R[1]; self.uses = R[0] | R[1]; self.kind = 'valu'
            if base in ('v_fmac_f32', 'v_mac_f32', 'v_pk_fmac_f16', 'v_writelane_b32', 'v_dot2c_f32_bf16'): self.uses |= R[0]
            if base.startswith('v_cmpx'): self.defs |= EXEC
            if base == 'v_cndmask_b32' and len(ops) == 3: self.uses |= VCC
            if base in ('v_add_co_u32', 'v_sub_co_u32', 'v_addc_co_u32', 'v_div_scale_f32', 'v_mad_u64_u32'):
                self.defs |= R[1]; self.uses = set().union(*R[2:])
            if base == 'v_div_fmas_f32': self.uses |= VCC
            if any(w in mods for w in DPPW) or op.endswith('_dpp'):
                self.dpp = True; self.uses |= R[0]
            if 'dst_sel' in mods or 'op_sel' in mods and base.startswith('v_cvt'): self.uses |= R[0]
        elif op.startswith('ds_'):
            self.kind = 'ds'
            if op.startswith('ds_read') or op.startswith('ds_bpermute') or op.startswith('ds_permute') or op.startswith('ds_swizzle') or '_rtn_' in op:
                self.defs = R[0]; self.uses = set().union(*R[1:])
            else:
                self.uses = set().union(*R)
        elif op.startswith('buffer_') or op.startswith('global_'):
            self.kind = 'vmem'
            allm = ' ' + mods + ' '
            if ' lds ' in allm or '_lds_' in op:
                self.lds = True; self.uses = set().union(*R) | M0
            elif '_load' in op:
                self.defs = R[0]; self.uses = set().union(*R[1:])
            elif '_store' in op:
                self.uses = set().union(*R)
                self.wide = op.endswith('x4') or op.endswith('x3')
                self.C = R[0] if op.startswith('buffer_') else R[1]
            elif '_atomic' in op:
                self.uses = set().union(*R)
                if ' sc0 ' in allm: self.defs = R[0]
            elif op in ('buffer_wbl2', 'buffer_inv'):
                pass
            else: raise ValueError(text)
        elif op.startswith('s_load') or op.startswith('s_buffer_load') or op in ('s_memtime', 's_memrealtime'):
            self.kind = 'smem'; self.defs = R[0]; self.uses = set().union(*R[1:]) if len(R) > 1 else set()
        elif op.startswith('s_'):
            self.kind = 'salu'
            if op in ('s_waitcnt', 's_nop', 's_barrier', 's_endpgm', 's_branch', 's_setprio', 's_sleep') or op.startswith('s_cbranch'):
                self.kind = 'ctl'
            elif op.startswith('s_cmp') or op.startswith('s_bitcmp'):
                self.uses = set().union(*R)
            else:
                self.defs = set(R[0]); self.uses = set().union(*R[1:]) if len(R) > 1 else set()
                if 'saveexec' in op: self.defs |= EXEC; self.uses |= EXEC
                if op in ('s_addk_i32', 's_mulk_i32'): self.uses |= R[0]
        else:
            raise ValueError('unknown op: ' + text)

def states(ins):
    if ins.kind in ('pseudo', 'label', 'dir'): return 0
    if ins.op == 's_nop': return int(ins.text.split()[1], 0) + 1
    return 1

def need_gap(p, c):
    n = 0
    vd = {r for r in p.defs if r[0] in 'va'}
    sd = {r for r in p.defs if r[0] == 's'}
    if p.kind == 'valu':
        if c.kind == 'mfma':
            if vd & c.uses: n = max(n, 2)
            if sd & EXEC: n = max(n, 4)
        if c.kind == 'valu':
            cb = c.op
            if c.dpp and vd & c.uses: n = max(n, 2)
            if c.dpp and sd & EXEC: n = max(n, 5)
            if cb.startswith('v_permlane') and vd & c.uses: n = max(n, 2)
            if cb.startswith('v_permlane') and sd & EXEC: n = max(n, 4)
            if (cb.startswith('v_readlane') or cb.startswith('v_readfirstlane')) and vd & c.uses: n = max(n, 1)
            if (cb.startswith('v_readlane') or cb.startswith('v_readfirstlane') or cb.startswith('v_writelane')) and (sd & EXEC): n = max(n, 4)
            if sd & c.uses:
                n = max(n, 4 if (cb.startswith('v_readlane') or cb.startswith('v_writelane') or cb.startswith('v_div_fmas')) else 2)
            if any(p.op.startswith(t) for t in TRANS) and vd & c.uses: n = max(n, 1)
            if ('op_sel' in p.text or 'dst_sel' in p.text) and not p.op.startswith('v_pk') and vd & (c.uses | c.defs): n = max(n, 1)
        if c.kind in ('vmem',) and sd & c.uses: n = max(n, 5)
        if c.kind in ('salu', 'smem') and sd & c.uses: n = max(n, 1)
        if c.kind == 'ctl' and c.op.startswith('s_cbranch_vcc') and sd & VCC: n = max(n, 1)
    if p.kind == 'salu':
        if c.kind == 'vmem' and c.lds and sd & M0: n = max(n, 1)
    if p.kind == 'vmem' and p.wide:
        if p.C & c.defs: n = max(n, 2 if c.kind in ('valu', 'mfma') else 1)
    if p.kind == 'mfma':
        big = p.passes == 8
        if c.kind == 'mfma':
            if p.defs & (c.A | c.B): n = max(n, 12 if big else 8)
            if p.defs & c.C:
                if not (p.defs == c.C and p.op == c.op): n = max(n, 10 if big else 6)
            elif p.defs & c.defs and not (p.defs == c.defs and p.passes == c.passes):
                n = max(n, 10 if big else 6)
        elif c.kind in ('valu', 'vmem', 'ds'):
            if p.defs & (c.uses | c.defs): n = max(n, 12 if big else 8)
            if c.kind == 'valu' and p.C & c.defs: n = max(n, 7 if big else 3)
            if c.kind in ('vmem', 'ds') and p.C & c.defs: n = max(n, 7 if big else 3)
    return n

class Kernel:
    def __init__(self, name):
        self.name = name; self.ins = []
    def e(self, text, tag=None):
        if isinstance(text, (list, tuple)) and not isinstance(text, str):
            for t in text:
                if isinstance(t, tuple): self.ins.append(Ins(t[0], t[1]))
                else: self.ins.append(Ins(t))
            return
        for line in text.split('\n'):
            line = line.strip()
            if line: self.ins.append(Ins(line, tag))
    def insert_waits(self):
        out = []
        vm = []
        lg = []
        saved = {}
        def emit_wait(nv, nl):
            parts = []
            if nv is not None and nv < len(vm):
                assert nv <= 63, 'vmcnt overflow %d' % nv
                parts.append(f'vmcnt({nv})'); del vm[:len(vm) - nv]
            if nl is not None and nl < len(lg):
                if any(x[2] for x in lg): nl = 0
                if nl > 15: nl = 15
                if nl < len(lg):
                    parts.append(f'lgkmcnt({nl})'); del lg[:len(lg) - nl]
            if parts: out.append(Ins('s_waitcnt ' + ' '.join(parts)))
        for I in self.ins:
            if I.kind == 'pseudo':
                if I.pseudo == 'waitvm':
                    if I.arg in (None, 'all'): emit_wait(0, None)
                    else:
                        tags = I.arg.split()
                        idx = [k for k, x in enumerate(vm) if x[1] in tags]
                        if idx: emit_wait(len(vm) - 1 - idx[-1], None)
                elif I.pseudo == 'waitlg':
                    if I.arg in (None, 'all'): emit_wait(None, 0)
                    else:
                        tags = I.arg.split()
                        idx = [k for k, x in enumerate(lg) if x[1] in tags]
                        if idx: emit_wait(None, len(lg) - 1 - idx[-1])
                elif I.pseudo == 'wait2':
                    tv, tl = I.arg.split()
                    iv = [k for k, x in enumerate(vm) if x[1] == tv]; il = [k for k, x in enumerate(lg) if x[1] == tl]
                    emit_wait(len(vm) - 1 - iv[-1] if iv else None, len(lg) - 1 - il[-1] if il else None)
                elif I.pseudo == 'waitall': emit_wait(0, 0)
                elif I.pseudo == 'save': saved[I.arg] = (list(vm), list(lg))
                elif I.pseudo == 'restore':
                    vm[:] = saved[I.arg][0]; lg[:] = saved[I.arg][1]
                elif I.pseudo == 'check':
                    ca = I.arg.split(); sv, sl = saved[ca[0]]
                    if len(ca) > 1:
                        assert not any(y[0] for y in vm[len(vm) - 0:]) ; sv = list(vm)
                    def norm(x): return [(frozenset(y[0]), y[1]) for y in x]
                    nv, nl = norm(vm), norm(lg); rv, rl = norm(sv), norm(sl)
                    assert (nv == rv[len(rv) - len(nv):] if nv else True) and len(nv) <= len(rv), f'vm state mismatch at {I.arg}\n{nv}\n{rv}'
                    assert (nl == rl[len(rl) - len(nl):] if nl else True) and len(nl) <= len(rl), f'lgkm state mismatch at {I.arg}\n{nl}\n{rl}'
                elif I.pseudo == 'clear': vm.clear(); lg.clear()
                elif I.pseudo in ('loophead', 'loopend', 'hzreset'): out.append(I)
                else: raise ValueError(I.text)
                continue
            touch = I.uses | I.defs
            nv = nl = None
            if touch:
                for k in range(len(vm) - 1, -1, -1):
                    if vm[k][0] & touch: nv = len(vm) - 1 - k; break
                for k in range(len(lg) - 1, -1, -1):
                    if lg[k][0] & touch: nl = len(lg) - 1 - k; break
            if I.op == 's_waitcnt':
                m = re.search(r'vmcnt\((\d+)\)', I.text)
                if m and int(m.group(1)) < len(vm): del vm[:len(vm) - int(m.group(1))]
                m = re.search(r'lgkmcnt\((\d+)\)', I.text)
                if m and int(m.group(1)) < len(lg):
                    n = int(m.group(1))
                    if not any(x[2] for x in lg) or n == 0: del lg[:len(lg) - n]
            emit_wait(nv, nl)
            if I.kind == 'vmem' and len(vm) >= 63: emit_wait(62, None)
            out.append(I)
            if I.kind == 'vmem': vm.append((set(I.defs), I.tag))
            elif I.kind == 'ds': lg.append((set(I.defs), I.tag, False))
            elif I.kind == 'smem': lg.append((set(I.defs), I.tag, True))
        self.ins = out
    def insert_nops(self):
        out = []; heads = {}
        W = 14
        def gap_for(hist, I):
            need = 0; d = 0
            for P in reversed(hist):
                if P.pseudo == 'hzreset': break
                if d >= W: break
                if P.kind not in ('pseudo', 'label', 'dir'):
                    g = need_gap(P, I)
                    if g - d > need: need = g - d
                d += states(P)
            return need
        self.nnops = 0
        for I in self.ins:
            if I.pseudo == 'loophead': heads[I.arg] = len(out); out.append(I); continue
            if I.pseudo == 'loopend':
                h = heads[I.arg]; hist = list(out); d = 0; k = h
                while d < W and k < len(out):
                    J = out[k]
                    if J.kind not in ('pseudo', 'label', 'dir'):
                        g = gap_for(hist, J)
                        assert g <= 0, f'back-edge hazard before {J.text} needs {g}'
                    hist.append(J); d += states(J); k += 1
                out.append(I); continue
            if I.kind not in ('pseudo', 'label', 'dir'):
                g = gap_for(out, I)
                if g > 0:
                    out.append(Ins(f's_nop {g-1}')); self.nnops += 1
            out.append(I)
        self.ins = out
    stsuffix = ''
    def text(self):
        if self.stsuffix:
            for I in self.ins:
                if I.op.startswith('buffer_store') and 's[60:63]' not in I.text: I.text += self.stsuffix
        self.insert_waits(); self.insert_nops()
        L = []
        for I in self.ins:
            if I.kind == 'pseudo': continue
            L.append(I.text if I.kind in ('label', 'dir') else ' ' + I.text)
        return '\n'.join(L)
    def maxregs(self):
        mv = ma = -1
        for I in self.ins:
            for c, i in I.defs | I.uses:
                if c == 'v': mv = max(mv, i)
                if c == 'a': ma = max(ma, i)
        return mv + 1, ma + 1

def interleave(main, fill, start=0, per=1, every=1):
    fill = list(fill); k = start
    while fill:
        if k >= len(main): main[-1].extend(fill); break
        for _ in range(per):
            if fill:
                x = fill.pop(0)
                if isinstance(x, list): main[k].extend(x)
                else: main[k].append(x)
        k += every
    return main

def flatten(slots):
    o = []
    for sl in slots: o.extend(sl)
    return o

def wrap_file(header, kernels, launches):
    L = [header.rstrip('\n')]
    for (n, g, b, l) in launches:
        L.append(f'; @launch kernel={n} grid=({g},1,1) block=({b},1,1) lds={l}')
    L.append('.amdgcn_target "amdgcn-amd-amdhsa--gfx950"')
    L.append('.text')
    desc = []
    for K in kernels:
        t = K.text()
        nv, na = K.maxregs()
        acc = max(4, (nv + 3) // 4 * 4)
        tot = acc + na if na else max(nv, 1)
        L += [f'.globl {K.name}', '.p2align 8', f'.type {K.name},@function', f'{K.name}:', t]
        desc += ['.p2align 6', f'.amdhsa_kernel {K.name}', f'  .amdhsa_next_free_vgpr {tot}', '  .amdhsa_next_free_sgpr 102',
                 f'  .amdhsa_accum_offset {acc}', '  .amdhsa_group_segment_fixed_size 0', '  .amdhsa_kernarg_size 112',
                 '  .amdhsa_user_sgpr_count 2', '  .amdhsa_user_sgpr_kernarg_segment_ptr 1', '  .amdhsa_system_sgpr_workgroup_id_x 1',
                 '.end_amdhsa_kernel']
    L.append('.section .rodata,"a"')
    L += desc
    return '\n'.join(L) + '\n'
```

```python
from k46 import *
M32 = 'v_mfma_f32_32x32x16_bf16'
def spread(mf, va, first=None):
    out = []; n = len(mf)
    for i, m in enumerate(mf):
        out.append([m])
        out[-1] += va[len(va) * i // n: len(va) * (i + 1) // n]
    return out

def build_k3(name='k3_kernel', R=16, opt=None):
    opt = opt or {}
    K = Kernel(name)
    guard(K, 256)
    if opt.get('stamp'): stamp(K, 0)
    K.e(f's_load_dwordx2 s[4:5], s[0:1], {KA["wq"]}')
    K.e(f's_load_dwordx2 s[8:9], s[0:1], {KA["ws"]}')
    K.e(f's_load_dwordx2 s[98:99], s[0:1], {KA["wo"]}')
    K.e(f's_load_dwordx2 s[100:101], s[0:1], {KA["wd"]}')
    K.e(f's_load_dwordx4 s[44:47], s[0:1], {KA["wg"]}')
    tile_ids(K)
    regs = dict(acc=4, vd=36, vb=40, vt=42, aa=0, ab=32)
    G = G64(K, 32, 'nat', regs, NS=4, R=R)
    if opt.get('perm'): G.VP = 240; perm_table(K, G.VP, 8, opt['perm'], 1, 2)
    G.setup(0, 3, 14, 15, 1, 2)
    srd(K, 20, 4, 0, 1024 * 2048)
    srd(K, 24, 8, WS_H1, 0x400000)
    tch = l2touch(K, G, 32, opt, 234)
    G.prologue(opt.get('pro', 2))
    S = [48, 64]; NM = [80, 96]; P = [112, 120]; L = [128, 132]; O = [136, 152]; Q = [168, 176]; SEL = 184
    F = [188, 204]; VRD = 220; VL = 221; VS0 = 222; VB2 = 224; VJ = 225; VO = 226; VU = 227; VM = 229
    RING = 65536; FLAG = 131072
    fr = v
    if opt.get('fa'): fr = a; F = [160, 176]
    srd(K, 28, 8, WS_KV, 0x40000)
    srd(K, 52, 98, 0, 1024 * 2048)
    K.e(f'v_lshlrev_b32 v{VL}, 4, v0\nv_add_u32 v{VB2}, {RING}, v{VL}')
    K.e(f's_lshl_b32 s56, s3, 12\ns_add_u32 s6, s56, 2048\ns_add_u32 s56, s56, {RING}')
    K.e(f's_lshl_b32 s7, s2, 2\ns_add_u32 s7, s7, s3\ns_lshl_b32 s7, s7, 11\nv_lshlrev_b32 v{VJ}, 5, v0')
    K.e('s_and_b32 s10, s2, 3\ns_lshr_b32 s11, s2, 2\ns_cmp_ge_u32 s11, 28\ns_cselect_b32 s32, s46, s44\ns_cselect_b32 s33, s47, s45')
    K.e('s_cselect_b32 s16, 28, 0\ns_cselect_b32 s12, 8, 0\ns_sub_u32 s11, s11, s16')
    K.e(f's_cmp_ge_u32 s2, 224\ns_cselect_b32 s34, 0, {1024*7168}\ns_mov_b32 s35, 0x00020000')
    K.e('v_lshrrev_b32 v1, 4, v0\nv_mul_u32_u24 v2, 7168, v1\nv_lshlrev_b32 v1, 1, v1\nv_xor_b32 v1, v1, v0\nv_and_b32 v1, 15, v1')
    K.e(f'v_lshl_add_u32 v{VS0}, v1, 4, v2\nv_xor_b32 v1, 8, v1\nv_lshl_add_u32 v1, v1, 4, v2\nv_add_u32 v{VS0+1}, {4*7168-1024}, v1')
    def ring_pro():
        Lq = [[f'buffer_load_dwordx4 {fr(F[1]+8+4*b,4)}, v{VL}, s[28:31], 0 offen offset:{1024*b}'] for b in range(2)]
        for st in range(4):
            for i in range(4):
                g = []
                if i == 0: g = [f's_add_u32 m0, s56, {16384*st}', ('s_mov_b32 s42, s6' if st == 0 else 's_add_u32 s42, s42, 16384')]
                Lq.append(g + [(f'buffer_load_dwordx4 v{VL}, s[28:31], s42 offen offset:{1024*i} lds', f'R{st}')])
        return Lq
    for g in ring_pro(): G.Q.append((99, 0, g))
    K.e(f'v_lshrrev_b32 v1, 2, v0\nv_xor_b32 v1, v1, v0\nv_bfe_u32 v1, v1, 2, 1\nv_add_u32 v1, -1, v1\nv_and_b32 v{SEL}, 0x3f803f80, v1')
    for i in range(1, 4): K.e(f'v_mov_b32 v{SEL+i}, v{SEL}')
    srd(K, 36, 8, WS_O, 0x400000)
    srd(K, 44, 8, WS_MODB, 6144 * 2)
    srd(K, 48, 8, WS_UTF, 224 * 1024)
    K.e(f'v_bfe_u32 v1, v0, 4, 1\nv_lshlrev_b32 v1, 15, v1\nv_and_b32 v2, 15, v0\nv_lshl_add_u32 v1, v2, 4, v1\nv_lshrrev_b32 v2, 5, v0\nv_lshl_add_u32 v{VO}, v2, 8, v1')
    K.e('v_lshrrev_b32 v1, 2, v0\nv_and_b32 v2, 7, v1\ns_lshl_b32 s16, s3, 1\nv_xor_b32 v2, s16, v2\nv_lshlrev_b32 v1, 8, v1\nv_lshl_add_u32 v1, v2, 5, v1')
    K.e(f'v_and_b32 v2, 3, v0\nv_lshl_add_u32 v{VU}, v2, 3, v1\nv_xor_b32 v{VU+1}, 32, v{VU}')
    K.e(f'v_and_b32 v1, 1, v0\nv_lshlrev_b32 v1, 11, v1\nv_sub_u32 v1, 8192, v1\nv_lshrrev_b32 v2, 4, v0\nv_lshl_add_u32 v1, v2, 3, v1\ns_lshl_b32 s16, s10, 9\nv_add_u32 v{VM}, s16, v1')
    K.e(f's_mov_b32 s4, {f2h(LOG2E * 32 ** -0.5)}\ns_mov_b32 s5, s4\ns_mov_b32 s19, 0')
    if opt.get('stamp'): K.e('@waitvm W0'); stamp(K, 1)
    G.main(tch, maxper=opt.get('maxper', 5))
    for mt in range(4):
        q = Q[mt >> 1] + 4 * (mt & 1)
        for nt in range(2):
            A0 = G.acc(mt, nt)
            for j in (0, 2): K.e(f'v_pk_mul_f32 {v(A0+j,2)}, {v(A0+j,2)}, s[4:5]')
            K.e(f'v_cvt_pk_bf16_f32 v{q+2*nt}, v{A0}, v{A0+1}\nv_cvt_pk_bf16_f32 v{q+2*nt+1}, v{A0+2}, v{A0+3}')
        K.e(f'v_permlane16_swap_b32 v{q}, v{q+2}\nv_permlane16_swap_b32 v{q+1}, v{q+3}')
    def qk(h, fb, c): return [f'{M32} {v(S[h],16)}, {fr(fb+8,4)}, {v(Q[h],4)}, {c}', f'{M32} {v(S[h],16)}, {fr(fb+12,4)}, {v(Q[h]+4,4)}, {v(S[h],16)}']
    def pv(h, fb): return [f'{M32} {v(O[h],16)}, {fr(fb+4*b,4)}, {v(P[h]+4*b,4)}, {v(O[h],16)}' for b in range(2)]
    def ls(h): return [f'{MF} {v(L[h],4)}, {v(SEL,4)}, {v(P[h]+4*b,4)}, {v(L[h],4)}' for b in range(2)]
    def ex(h):
        va = []; s0 = S[h]; t0 = (4 + 16 * h) if opt.get('tmp') else s0
        for i in range(0, 16, 2):
            va += [f'v_exp_f32 v{t0+i}, v{s0+i}', f'v_exp_f32 v{t0+i+1}, v{s0+i+1}']
            if i >= 2: va.append(f'v_cvt_pk_bf16_f32 v{P[h]+i//2-1}, v{t0+i-2}, v{t0+i-1}')
        va.append(f'v_cvt_pk_bf16_f32 v{P[h]+7}, v{t0+14}, v{t0+15}')
        return va
    def rowmax(h, d, init):
        s0 = S[h]
        r = [f'v_max3_f32 v{d}, v{s0}, v{s0+1}, ' + (f'v{s0+2}' if init else f'v{d}')]
        k = 3 if init else 2
        while k < 15: r.append(f'v_max3_f32 v{d}, v{s0+k}, v{s0+k+1}, v{d}'); k += 2
        if k == 15: r.append(f'v_max_f32 v{d}, v{s0+15}, v{d}')
        return r
    def bcast(h, d, bias):
        K.e(f'v_mov_b32 v3, v{d}\nv_permlane32_swap_b32 v{d}, v3\nv_max_f32 v{d}, v{d}, v3\nv_sub_f32 v{NM[h]}, {f2h(-bias)}, v{d}')
        for i in range(1, 16): K.e(f'v_mov_b32 v{NM[h]+i}, v{NM[h]}')
    a0 = qk(0, F[1], '0'); b0 = qk(1, F[1], '0')
    K.e([a0[0], b0[0], a0[1], b0[1]])
    for h in range(2): K.e(rowmax(h, 1 + h, True)); bcast(h, 1 + h, opt.get('bias', 64.0))
    K.e(f'{name}_att:')
    K.e(qk(0, F[1], v(NM[0], 16)))
    for h in range(2):
        for i in range(16): K.e(f'v_mov_b32 v{O[h]+i}, 0')
        for i in range(4): K.e(f'v_mov_b32 v{L[h]+i}, 0')
    K.e(f's_mov_b32 s43, 0\nv_mov_b32 v{VRD}, v{VB2}')
    K.e(f's_lshl_b32 s57, s3, 14\ns_lshl_b32 s58, s10, 2\ns_add_u32 s58, s58, s3\ns_mul_i32 s58, s58, {64*7168}\ns_lshl_b32 s16, s11, 8\ns_add_u32 s58, s58, s16')
    K.e('@waitvm R0\ns_barrier')
    if opt.get('stamp'): stamp(K, 2); K.e('@waitlg all')
    def freads(fb, off): return [f'ds_read_b128 {fr(fb+4*i,4)}, v{VRD} offset:{off+1024*i}' for i in (2, 0, 3, 1)]
    K.e(freads(F[0], 0))
    UN = opt.get('un', 1)
    pre = spread(qk(1, F[1], v(NM[1], 16)), ex(0)[:-4])
    pre[1].insert(1, '@waitlg all')
    K.e(flatten(pre))
    def order(q, p, l):
        d = dict(q=list(q), p=list(p), l=list(l))
        return [d[c].pop(0) for c in opt.get('ord', 'qplqpl')]
    def loop(lab, n, slab, vmw):
        K.e(f's_mov_b32 s18, {n // UN}')
        K.e(f'@save {lab}\n@loophead {lab}\n.p2align 6\n{name}_{lab}:')
        sl = []; gap = {}
        def put(g, x):
            assert g not in gap, (g, x, gap[g])
            gap[g] = x
        for sg in range(UN):
            for u in range(4):
                fb = F[u & 1]; nb = F[1 - (u & 1)]; g0 = len(sl)
                sl += spread(order(qk(0, fb, v(NM[0], 16)), pv(0, fb), ls(0)), ex(1)) + spread(order(qk(1, fb, v(NM[1], 16)), pv(1, fb), ls(1)), ex(0))
                last = sg == UN - 1
                if u < 3:
                    for k, x in enumerate(freads(nb, 16384 * sg + 4096 * (u + 1))): put(g0 + 1 + k, x)
                else:
                    put(g0, f's_waitcnt vmcnt({vmw})'); put(g0 + 1, 's_barrier')
                    for k, x in enumerate(freads(nb, 0 if last else 16384 * (sg + 1))): put(g0 + 2 + k, x)
                    for k in range(4): put(g0 + 6 + k, f'buffer_load_dwordx4 v{VL}, s[28:31], s42 offen offset:{1024*k} lds')
                put(g0 + 10, '@waitlg all')
                if u == 2:
                    put(g0 + 5, 's_add_u32 s42, s42, 16384')
                    if UN == 4: put(g0 + 6, f's_add_u32 m0, s56, {16384*sg}')
                    else:
                        put(g0 + 6, 's_add_u32 m0, s43, s56'); put(g0 + 7, 's_add_u32 s43, s43, 16384'); put(g0 + 8, 's_and_b32 s43, s43, 0xffff')
                        if last: sl[g0 + 9].append(f'v_add_u32 v{VRD}, s43, v{VB2}')
                    if last: put(g0 + 9, 's_sub_u32 s18, s18, 1'); put(g0 + 11, 's_cmp_lg_u32 s18, 0')
                if slab and u == 0:
                    put(g0 + 5, 's_mov_b32 m0, s57'); put(g0 + 6, 's_add_u32 s57, s57, 2048')
                    put(g0 + 7, f'buffer_load_dwordx4 v{VS0}, s[32:35], s58 offen lds')
                    put(g0 + 8, f'buffer_load_dwordx4 v{VS0+1}, s[32:35], s58 offen offset:1024 lds')
                    put(g0 + 9, f's_add_u32 s58, s58, {8*7168}')
        for g, x in gap.items(): sl[g].insert(1, x)
        tail = sl[-1][1:]; assert len(tail) == 4
        K.e(tail); K.e(flatten(sl)[:-4])
        K.e(f's_cbranch_scc1 {name}_{lab}\n@check {lab} lg\n@loopend {lab}')
    loop('l1', 8, True, 10)
    for st in range(8):
        for tt in range(2): K.e(f'buffer_load_dwordx2 {a(4*st+2*tt,2)}, v{VM}, s[44:47], 0 offen offset:{64*st+32*tt}')
    K.e(f'buffer_load_dword v{VJ+5}, v{VJ}, s[52:55], s7 offen')
    if not opt.get('nowd'):
        srd(K, 52, 100, 0, 3584 * 2048)
        K.e(f's_lshl_b32 s7, s7, 2\nv_lshlrev_b32 v{VJ}, 1, v{VJ}')
        K.e(f'buffer_load_dword v{VJ+6}, v{VJ}, s[52:55], s7 offen\ns_add_u32 s7, s7, 4096\nbuffer_load_dword v{VJ+7}, v{VJ}, s[52:55], s7 offen')
        srd(K, 52, 98, 0, 1024 * 2048)
        K.e(f's_lshr_b32 s7, s7, 13\ns_lshl_b32 s7, s7, 11\nv_lshrrev_b32 v{VJ}, 1, v{VJ}')
    loop('l2', 8, False, 8)
    if opt.get('stamp'): stamp(K, 3)
    K.e(f's_mov_b32 s16, {f2h(2.0**60)}')
    K.e(f'v_cmp_nle_f32 vcc, v{L[0]}, s16\nv_cmp_nle_f32 s[20:21], v{L[1]}, s16\ns_or_b64 vcc, vcc, s[20:21]')
    K.e(f's_cmp_lg_u64 vcc, 0\ns_cselect_b32 s16, 1, 0\nv_mov_b32 v1, s16\ns_lshl_b32 s16, s3, 2\ns_add_u32 s16, s16, {FLAG}\nv_mov_b32 v2, s16')
    K.e('ds_write_b32 v2, v1')
    for st in range(8):
        for e in range(2):
            for tt in range(2): K.e(f'ds_read_b64_tr_b16 {a(32+8*st+4*e+2*tt,2)}, v{VU+e} offset:{8192*st+4096*tt}')
    K.e('s_lshl_b32 s16, s15, 15\ns_lshl_b32 s17, s13, 11\ns_add_u32 s16, s16, s17')
    for h in range(2):
        K.e(f'v_rcp_f32 v4, v{L[h]}\ns_nop 0\nv_mov_b32 v5, v4')
        for hh in range(2):
            o = O[h] + 8 * hh
            for j in range(0, 8, 2): K.e(f'v_pk_mul_f32 {v(o+j,2)}, {v(o+j,2)}, v[4:5]')
            for j in range(0, 8, 2): K.e(f'v_cvt_pk_bf16_f32 v{o+j//2}, v{o+j}, v{o+j+1}')
            K.e(f'buffer_store_dwordx4 {v(o,4)}, v{VO}, s[36:39], s16 offen offset:{1024*h+512*hh}')
    K.e(f'v_mov_b32 v2, {FLAG}')
    K.e('@waitlg all\ns_barrier')
    K.e('ds_read_b128 v[4:7], v2')
    K.e(f's_cmp_ge_u32 s2, 224\ns_cbranch_scc1 {name}_nout')
    K.e('@save c')
    for st in range(8):
        for e in range(2): K.e(f'{MF} {v(8+4*e,4)}, {a(4*st,4)}, {a(32+8*st+4*e,4)}, ' + ('0' if st == 0 else v(8+4*e,4)))
    K.e('s_lshl_b32 s16, s11, 3\ns_lshl_b32 s17, s3, 1\ns_add_u32 s16, s16, s17\ns_lshl_b32 s16, s16, 10\ns_lshl_b32 s17, s10, 8\ns_add_u32 s16, s16, s17\ns_add_u32 s16, s16, s12')
    for e in range(2):
        b = 8 + 4 * e
        K.e(f'v_cvt_pk_bf16_f32 v{b+2}, v{b}, v{b+1}\nv_and_b32 v{b}, 0xffff0000, v{b+2}\nv_sub_f32 v{b+1}, v{b+1}, v{b}\nv_cvt_pk_bf16_f32 v{b+3}, v{b+1}, v{b}')
    K.e('s_mov_b64 exec, 0xffff')
    for e in range(2): K.e(f'buffer_store_dwordx2 {v(10+4*e,2)}, v{VL}, s[48:51], s16 offen offset:{1024*e}')
    K.e('s_mov_b64 exec, -1')
    K.e(f'{name}_nout:\n@restore c')
    K.e('v_or3_b32 v4, v4, v5, v6\nv_or_b32 v4, v4, v7\nv_readfirstlane_b32 s16, v4')
    K.e(f's_cmp_gt_u32 s16, s19\ns_cbranch_scc1 {name}_fb')
    if opt.get('stamp'):
        K.e('@waitall'); stamp(K, 4); dump_stamps(K, 5, 8, opt.get('kidx', 0))
    K.e('s_endpgm')
    K.e(f'{name}_fb:\n@clear\n@hzreset\ns_waitcnt vmcnt(0) lgkmcnt(0)')
    K.e('s_mov_b32 s19, 1\ns_mov_b32 s18, 0\nv_mov_b32 v1, 0xff800000\nv_mov_b32 v2, 0xff800000')
    K.e(f'@save fb\n@loophead fb\n{name}_fbl:')
    for b in range(2): K.e(f'buffer_load_dwordx4 {fr(F[1]+8+4*b,4)}, v{VL}, s[28:31], s18 offen offset:{1024*b}')
    K.e([a0[0], b0[0], a0[1], b0[1]])
    for h in range(2): K.e(rowmax(h, 1 + h, False))
    K.e(f's_add_u32 s18, s18, 4096\ns_cmp_lt_u32 s18, 0x40000\ns_cbranch_scc1 {name}_fbl\n@check fb\n@loopend fb')
    for h in range(2): bcast(h, 1 + h, 0.0)
    K.e(flatten(ring_pro()))
    K.e(f'@waitall\ns_nop 1\ns_branch {name}_att')
    finish(K)
    return K, (name, 256, 256, FLAG + 16)
if __name__ == '__main__':
    from mk import onefile
    onefile('k3a.s', [build_k3(opt=dict(stamp=1))])
    onefile('k3b.s', [build_k3(opt=dict(stamp=1, un=2))])
    onefile('k3c.s', [build_k3(opt=dict(stamp=1, un=4))])
    onefile('k3d.s', [build_k3(opt=dict(stamp=1, un=4, fa=1))])
    onefile('k3e.s', [build_k3(opt=dict(stamp=1, un=2, ord='qpqlpl'))])
    onefile('k3f.s', [build_k3(opt=dict(stamp=1, un=2, ord='qlpqlp'))])
```

```python
import sys
from mk import onefile
from k1 import build_k1
from k2 import build_k2
from k3 import build_k3
from k46 import build_k46
from k5 import build_k5
from common import NAME
def full(path, o=None):
    o = o or {}
    def op(i, **kw):
        d = dict(kw); d.update(o.get(f'k{i}', {}))
        if o.get('stamp'): d.update(stamp=1, kidx=i - 1)
        return d
    parts = [build_k1(opt=op(1)), build_k2(opt=op(2)), build_k3(opt=op(3, un=2)),
             build_k46(4, opt=op(4)), build_k5(NS=4, R=6, opt=op(5)), build_k46(6, opt=op(6))]
    for i, pt in enumerate(parts): pt[0].stsuffix = o.get('st', {}).get(i + 1, '')
    return onefile(path, parts)
if __name__ == '__main__':
    t = full('cdna_kernels/' + NAME + '.s')
    print(len(t))
```

```python
import re

def v(i, n=1): return f'v{i}' if n == 1 else f'v[{i}:{i+n-1}]'
def a(i, n=1): return f'a{i}' if n == 1 else f'a[{i}:{i+n-1}]'
def s(i, n=1): return f's{i}' if n == 1 else f's[{i}:{i+n-1}]'

_reg = re.compile(r'^(-|\|)?(abs\()?([vas])(\d+|\[(\d+):(\d+)\])\)?\|?$')
def regs_of(tok):
    tok = tok.strip()
    if tok in ('vcc',): return {('s', 106), ('s', 107)}
    if tok == 'vcc_lo': return {('s', 106)}
    if tok == 'vcc_hi': return {('s', 107)}
    if tok == 'exec': return {('s', 126), ('s', 127)}
    if tok == 'exec_lo': return {('s', 126)}
    if tok == 'exec_hi': return {('s', 127)}
    if tok == 'm0': return {('s', 124)}
    m = _reg.match(tok)
    if not m: return set()
    c = m.group(3)
    if m.group(5) is not None:
        return {(c, i) for i in range(int(m.group(5)), int(m.group(6)) + 1)}
    return {(c, int(m.group(4)))}

TRANS = ('v_exp_f32', 'v_log_f32', 'v_rcp_f32', 'v_rsq_f32', 'v_sqrt_f32', 'v_sin_f32', 'v_cos_f32')
VCC = {('s', 106), ('s', 107)}
EXEC = {('s', 126), ('s', 127)}
M0 = {('s', 124)}
DPPW = ('row_shr', 'row_shl', 'row_ror', 'quad_perm', 'row_mirror', 'row_half_mirror', 'row_bcast', 'row_newbcast', 'wave_')

class Ins:
    __slots__ = ('text', 'op', 'defs', 'uses', 'kind', 'tag', 'passes', 'A', 'B', 'C', 'dpp', 'wide', 'lds', 'pseudo', 'arg')
    def __init__(self, text, tag=None):
        self.text = text; self.tag = tag
        self.defs = set(); self.uses = set(); self.kind = 'other'; self.passes = 0
        self.A = self.B = self.C = set(); self.dpp = False; self.wide = False; self.lds = False
        self.pseudo = None; self.arg = None
        t = text.split(';')[0].strip()
        if t.startswith('@'):
            p = t[1:].split(None, 1); self.pseudo = p[0]; self.arg = p[1] if len(p) > 1 else None
            self.op = '@'; self.kind = 'pseudo'; return
        if t.endswith(':') or t.startswith('.') or not t:
            self.op = t; self.kind = 'label' if t.endswith(':') else 'dir'; return
        p = t.split(None, 1); op = p[0]; self.op = op
        rest = p[1] if len(p) > 1 else ''
        ops = []; cur = ''; d = 0
        for ch in rest:
            if ch == '[': d += 1
            if ch == ']': d -= 1
            if ch == ',' and d == 0: ops.append(cur.strip()); cur = ''
            else: cur += ch
        ops.append(cur.strip())
        mods = ''
        if ops and ' ' in ops[-1]:
            q = ops[-1].split(None, 1); ops[-1] = q[0]; mods = q[1]
        R = [regs_of(o) for o in ops]
        base = op.replace('_e32', '').replace('_e64', '').replace('_dpp', '').replace('_sdwa', '')
        if op.startswith('v_mfma'):
            self.kind = 'mfma'; self.defs = R[0]; self.A, self.B, self.C = R[1], R[2], R[3]
            self.uses = R[1] | R[2] | R[3]
            self.passes = 8 if '32x32x16' in op else 4 if ('16x16x32' in op or '16x16x16' in op) else None
            assert self.passes
        elif op.startswith('v_'):
            self.kind = 'valu'
            self.defs = set(R[0]); self.uses = set().union(*R[1:]) if len(R) > 1 else set()
            if base.startswith('v_permlane') and 'swap' in base:
                self.defs = R[0] | R[1]; self.uses = R[0] | R[1]; self.kind = 'valu'
            if base in ('v_fmac_f32', 'v_mac_f32', 'v_pk_fmac_f16', 'v_writelane_b32', 'v_dot2c_f32_bf16'): self.uses |= R[0]
            if base.startswith('v_cmpx'): self.defs |= EXEC
            if base == 'v_cndmask_b32' and len(ops) == 3: self.uses |= VCC
            if base in ('v_add_co_u32', 'v_sub_co_u32', 'v_addc_co_u32', 'v_div_scale_f32', 'v_mad_u64_u32'):
                self.defs |= R[1]; self.uses = set().union(*R[2:])
            if base == 'v_div_fmas_f32': self.uses |= VCC
            if any(w in mods for w in DPPW) or op.endswith('_dpp'):
                self.dpp = True; self.uses |= R[0]
            if 'dst_sel' in mods or 'op_sel' in mods and base.startswith('v_cvt'): self.uses |= R[0]
        elif op.startswith('ds_'):
            self.kind = 'ds'
            if op.startswith('ds_read') or op.startswith('ds_bpermute') or op.startswith('ds_permute') or op.startswith('ds_swizzle') or '_rtn_' in op:
                self.defs = R[0]; self.uses = set().union(*R[1:])
            else:
                self.uses = set().union(*R)
        elif op.startswith('buffer_') or op.startswith('global_'):
            self.kind = 'vmem'
            allm = ' ' + mods + ' '
            if ' lds ' in allm or '_lds_' in op:
                self.lds = True; self.uses = set().union(*R) | M0
            elif '_load' in op:
                self.defs = R[0]; self.uses = set().union(*R[1:])
            elif '_store' in op:
                self.uses = set().union(*R)
                self.wide = op.endswith('x4') or op.endswith('x3')
                self.C = R[0] if op.startswith('buffer_') else R[1]
            elif '_atomic' in op:
                self.uses = set().union(*R)
                if ' sc0 ' in allm: self.defs = R[0]
            elif op in ('buffer_wbl2', 'buffer_inv'):
                pass
            else: raise ValueError(text)
        elif op.startswith('s_load') or op.startswith('s_buffer_load') or op in ('s_memtime', 's_memrealtime'):
            self.kind = 'smem'; self.defs = R[0]; self.uses = set().union(*R[1:]) if len(R) > 1 else set()
        elif op.startswith('s_'):
            self.kind = 'salu'
            if op in ('s_waitcnt', 's_nop', 's_barrier', 's_endpgm', 's_branch', 's_setprio', 's_sleep') or op.startswith('s_cbranch'):
                self.kind = 'ctl'
            elif op.startswith('s_cmp') or op.startswith('s_bitcmp'):
                self.uses = set().union(*R)
            else:
                self.defs = set(R[0]); self.uses = set().union(*R[1:]) if len(R) > 1 else set()
                if 'saveexec' in op: self.defs |= EXEC; self.uses |= EXEC
                if op in ('s_addk_i32', 's_mulk_i32'): self.uses |= R[0]
        else:
            raise ValueError('unknown op: ' + text)

def states(ins):
    if ins.kind in ('pseudo', 'label', 'dir'): return 0
    if ins.op == 's_nop': return int(ins.text.split()[1], 0) + 1
    return 1

def need_gap(p, c):
    n = 0
    vd = {r for r in p.defs if r[0] in 'va'}
    sd = {r for r in p.defs if r[0] == 's'}
    if p.kind == 'valu':
        if c.kind == 'mfma':
            if vd & c.uses: n = max(n, 2)
            if sd & EXEC: n = max(n, 4)
        if c.kind == 'valu':
            cb = c.op
            if c.dpp and vd & c.uses: n = max(n, 2)
            if c.dpp and sd & EXEC: n = max(n, 5)
            if cb.startswith('v_permlane') and vd & c.uses: n = max(n, 2)
            if cb.startswith('v_permlane') and sd & EXEC: n = max(n, 4)
            if (cb.startswith('v_readlane') or cb.startswith('v_readfirstlane')) and vd & c.uses: n = max(n, 1)
            if (cb.startswith('v_readlane') or cb.startswith('v_readfirstlane') or cb.startswith('v_writelane')) and (sd & EXEC): n = max(n, 4)
            if sd & c.uses:
                n = max(n, 4 if (cb.startswith('v_readlane') or cb.startswith('v_writelane') or cb.startswith('v_div_fmas')) else 2)
            if any(p.op.startswith(t) for t in TRANS) and vd & c.uses: n = max(n, 1)
            if ('op_sel' in p.text or 'dst_sel' in p.text) and not p.op.startswith('v_pk') and vd & (c.uses | c.defs): n = max(n, 1)
        if c.kind in ('vmem',) and sd & c.uses: n = max(n, 5)
        if c.kind in ('salu', 'smem') and sd & c.uses: n = max(n, 1)
        if c.kind == 'ctl' and c.op.startswith('s_cbranch_vcc') and sd & VCC: n = max(n, 1)
    if p.kind == 'salu':
        if c.kind == 'vmem' and c.lds and sd & M0: n = max(n, 1)
    if p.kind == 'vmem' and p.wide:
        if p.C & c.defs: n = max(n, 2 if c.kind in ('valu', 'mfma') else 1)
    if p.kind == 'mfma':
        big = p.passes == 8
        if c.kind == 'mfma':
            if p.defs & (c.A | c.B): n = max(n, 12 if big else 8)
            if p.defs & c.C:
                if not (p.defs == c.C and p.op == c.op): n = max(n, 10 if big else 6)
            elif p.defs & c.defs and not (p.defs == c.defs and p.passes == c.passes):
                n = max(n, 10 if big else 6)
        elif c.kind in ('valu', 'vmem', 'ds'):
            if p.defs & (c.uses | c.defs): n = max(n, 12 if big else 8)
            if c.kind == 'valu' and p.C & c.defs: n = max(n, 7 if big else 3)
            if c.kind in ('vmem', 'ds') and p.C & c.defs: n = max(n, 7 if big else 3)
    return n

class Kernel:
    def __init__(self, name):
        self.name = name; self.ins = []
    _uid = 0
    def uid(self): self._uid += 1; return self._uid
    def e(self, text, tag=None):
        if isinstance(text, (list, tuple)) and not isinstance(text, str):
            for t in text:
                if isinstance(t, tuple): self.ins.append(Ins(t[0], t[1]))
                else: self.ins.append(Ins(t))
            return
        for line in text.split('\n'):
            line = line.strip()
            if line: self.ins.append(Ins(line, tag))
    def insert_waits(self):
        out = []
        vm = []
        lg = []
        saved = {}
        def emit_wait(nv, nl):
            parts = []
            if nv is not None and nv < len(vm):
                assert nv <= 63, 'vmcnt overflow %d' % nv
                parts.append(f'vmcnt({nv})'); del vm[:len(vm) - nv]
            if nl is not None and nl < len(lg):
                if any(x[2] for x in lg): nl = 0
                if nl > 15: nl = 15
                if nl < len(lg):
                    parts.append(f'lgkmcnt({nl})'); del lg[:len(lg) - nl]
            if parts: out.append(Ins('s_waitcnt ' + ' '.join(parts)))
        for I in self.ins:
            if I.kind == 'pseudo':
                if I.pseudo == 'waitvm':
                    if I.arg in (None, 'all'): emit_wait(0, None)
                    else:
                        tags = I.arg.split()
                        idx = [k for k, x in enumerate(vm) if x[1] in tags]
                        if idx: emit_wait(len(vm) - 1 - idx[-1], None)
                elif I.pseudo == 'waitlg':
                    if I.arg in (None, 'all'): emit_wait(None, 0)
                    else:
                        tags = I.arg.split()
                        idx = [k for k, x in enumerate(lg) if x[1] in tags]
                        if idx: emit_wait(None, len(lg) - 1 - idx[-1])
                elif I.pseudo == 'wait2':
                    tv, tl = I.arg.split()
                    iv = [k for k, x in enumerate(vm) if x[1] == tv]; il = [k for k, x in enumerate(lg) if x[1] == tl]
                    emit_wait(len(vm) - 1 - iv[-1] if iv else None, len(lg) - 1 - il[-1] if il else None)
                elif I.pseudo == 'waitall': emit_wait(0, 0)
                elif I.pseudo == 'save': saved[I.arg] = (list(vm), list(lg))
                elif I.pseudo == 'restore':
                    vm[:] = saved[I.arg][0]; lg[:] = saved[I.arg][1]
                elif I.pseudo == 'check':
                    ca = I.arg.split(); sv, sl = saved[ca[0]]
                    if len(ca) > 1:
                        assert not any(y[0] for y in vm[len(vm) - 0:]) ; sv = list(vm)
                    def norm(x): return [(frozenset(y[0]), y[1]) for y in x]
                    nv, nl = norm(vm), norm(lg); rv, rl = norm(sv), norm(sl)
                    assert (nv == rv[len(rv) - len(nv):] if nv else True) and len(nv) <= len(rv), f'vm state mismatch at {I.arg}\n{nv}\n{rv}'
                    assert (nl == rl[len(rl) - len(nl):] if nl else True) and len(nl) <= len(rl), f'lgkm state mismatch at {I.arg}\n{nl}\n{rl}'
                elif I.pseudo == 'clear': vm.clear(); lg.clear()
                elif I.pseudo in ('loophead', 'loopend', 'hzreset'): out.append(I)
                else: raise ValueError(I.text)
                continue
            touch = I.uses | I.defs
            nv = nl = None
            if touch:
                for k in range(len(vm) - 1, -1, -1):
                    if vm[k][0] & touch: nv = len(vm) - 1 - k; break
                for k in range(len(lg) - 1, -1, -1):
                    if lg[k][0] & touch: nl = len(lg) - 1 - k; break
            if I.op == 's_waitcnt':
                m = re.search(r'vmcnt\((\d+)\)', I.text)
                if m and int(m.group(1)) < len(vm): del vm[:len(vm) - int(m.group(1))]
                m = re.search(r'lgkmcnt\((\d+)\)', I.text)
                if m and int(m.group(1)) < len(lg):
                    n = int(m.group(1))
                    if not any(x[2] for x in lg) or n == 0: del lg[:len(lg) - n]
            emit_wait(nv, nl)
            if I.kind == 'vmem' and len(vm) >= 63: emit_wait(62, None)
            out.append(I)
            if I.kind == 'vmem': vm.append((set(I.defs), I.tag))
            elif I.kind == 'ds': lg.append((set(I.defs), I.tag, False))
            elif I.kind == 'smem': lg.append((set(I.defs), I.tag, True))
        self.ins = out
    def insert_nops(self):
        out = []; heads = {}
        W = 14
        def gap_for(hist, I):
            need = 0; d = 0
            for P in reversed(hist):
                if P.pseudo == 'hzreset': break
                if d >= W: break
                if P.kind not in ('pseudo', 'label', 'dir'):
                    g = need_gap(P, I)
                    if g - d > need: need = g - d
                d += states(P)
            return need
        self.nnops = 0
        for I in self.ins:
            if I.pseudo == 'loophead': heads[I.arg] = len(out); out.append(I); continue
            if I.pseudo == 'loopend':
                h = heads[I.arg]; hist = list(out); d = 0; k = h
                while d < W and k < len(out):
                    J = out[k]
                    if J.kind not in ('pseudo', 'label', 'dir'):
                        g = gap_for(hist, J)
                        assert g <= 0, f'back-edge hazard before {J.text} needs {g}'
                    hist.append(J); d += states(J); k += 1
                out.append(I); continue
            if I.kind not in ('pseudo', 'label', 'dir'):
                g = gap_for(out, I)
                if g > 0:
                    out.append(Ins(f's_nop {g-1}')); self.nnops += 1
            out.append(I)
        self.ins = out
    align = None
    WIDEN = ('v_exp_f32', 'v_rcp_f32', 'v_rsq_f32', 'v_sqrt_f32', 'v_mov_b32', 'v_add_f32', 'v_mul_f32', 'v_sub_f32', 'v_max_f32', 'v_and_b32',
             'v_lshlrev_b32', 'v_lshrrev_b32', 'v_add_u32', 'v_xor_b32', 'v_or_b32', 'v_permlane32_swap_b32', 'v_permlane16_swap_b32', 'v_min_u32', 'v_mul_u32_u24', 'v_subrev_u32', 'v_sub_u32')
    def sizes(self):
        import subprocess, tempfile, os
        real = [I for I in self.ins if I.kind not in ('pseudo', 'dir')]
        src = '.amdgcn_target "amdgcn-amd-amdhsa--gfx950"\n.text\n' + '\n'.join(I.text for I in real) + '\n'
        with tempfile.TemporaryDirectory() as d:
            open(d + '/a.s', 'w').write(src)
            subprocess.check_call(['clang', '-target', 'amdgcn-amd-amdhsa', '-mcpu=gfx950', '-c', d + '/a.s', '-o', d + '/a.o'])
            o = subprocess.check_output(['llvm-objdump', '-d', d + '/a.o']).decode()
        sz = [4 * len(m.group(1).split()) for m in re.finditer(r'// [0-9A-F]+: ((?:[0-9A-F]{8} ?)+)', o)]
        ins = [I for I in real if I.kind != 'label']
        assert len(sz) == len(ins), (len(sz), len(ins))
        return {id(I): n for I, n in zip(ins, sz)}
    def align8(self, mode):
        sz = self.sizes(); out = []; ph = 0; run = []
        self.npad = self.nwide = 0
        for I in self.ins:
            if I.kind == 'dir' and I.text.startswith('.p2align'): ph = 0; run = []
            if I.kind in ('pseudo', 'dir', 'label'): out.append(I); continue
            n = sz[id(I)]
            if n == 4: run.append(len(out)); out.append(I); ph ^= 4; continue
            if ph:
                w = [k for k in run if out[k].op in self.WIDEN]
                sp = [k for k in run if out[k].op == 's_waitcnt' and 'vmcnt' in out[k].text and 'lgkmcnt' in out[k].text]
                if w:
                    J = out[w[0]]; J.text = J.text.replace(J.op, J.op + '_e64', 1); ph = 0; self.nwide += 1
                elif mode == 'all':
                    if sp:
                        a_, b_ = out[sp[0]].text.split()[1:3]
                        out[sp[0]] = Ins('s_waitcnt ' + a_); out.insert(sp[0] + 1, Ins('s_waitcnt ' + b_))
                    else: out.append(Ins('s_nop 0'))
                    ph = 0; self.npad += 1
            out.append(I); run = []
        self.ins = out
    stsuffix = ''
    def text(self):
        if self.stsuffix:
            for I in self.ins:
                if I.op.startswith('buffer_store') and 's[60:63]' not in I.text: I.text += self.stsuffix
        self.insert_waits(); self.insert_nops()
        if self.align: self.align8(self.align)
        L = []
        for I in self.ins:
            if I.kind == 'pseudo': continue
            L.append(I.text if I.kind in ('label', 'dir') else ' ' + I.text)
        return '\n'.join(L)
    def maxregs(self):
        mv = ma = -1
        for I in self.ins:
            for c, i in I.defs | I.uses:
                if c == 'v': mv = max(mv, i)
                if c == 'a': ma = max(ma, i)
        return mv + 1, ma + 1

def interleave(main, fill, start=0, per=1, every=1):
    fill = list(fill); k = start
    while fill:
        if k >= len(main): main[-1].extend(fill); break
        for _ in range(per):
            if fill:
                x = fill.pop(0)
                if isinstance(x, list): main[k].extend(x)
                else: main[k].append(x)
        k += every
    return main

def flatten(slots):
    o = []
    for sl in slots: o.extend(sl)
    return o

def wrap_file(header, kernels, launches):
    L = [header.rstrip('\n')]
    for (n, g, b, l) in launches:
        L.append(f'; @launch kernel={n} grid=({g},1,1) block=({b},1,1) lds={l}')
    L.append('.amdgcn_target "amdgcn-amd-amdhsa--gfx950"')
    L.append('.text')
    desc = []
    for K in kernels:
        t = K.text()
        nv, na = K.maxregs()
        acc = max(4, (nv + 3) // 4 * 4)
        tot = acc + na if na else max(nv, 1)
        L += [f'.globl {K.name}', '.p2align 8', f'.type {K.name},@function', f'{K.name}:', t]
        desc += ['.p2align 6', f'.amdhsa_kernel {K.name}', f'  .amdhsa_next_free_vgpr {tot}', '  .amdhsa_next_free_sgpr 102',
                 f'  .amdhsa_accum_offset {acc}', '  .amdhsa_group_segment_fixed_size 0', '  .amdhsa_kernarg_size 112',
                 '  .amdhsa_user_sgpr_count 2', '  .amdhsa_user_sgpr_kernarg_segment_ptr 1', '  .amdhsa_system_sgpr_workgroup_id_x 1',
                 '.end_amdhsa_kernel']
    L.append('.section .rodata,"a"')
    L += desc
    return '\n'.join(L) + '\n'
```

```python
from asmlib import *
NAME = 'adaLN_cond__grouped_kv_mqa__glu_gated_glu__prompt'
KA = dict(x=0, wq=8, wk=16, wv=24, wo=32, wg=48, wu=56, wd=64, c=72, wmod=80, out=88, dbg=96, ws=104)
WS_MOD   = 0x0
WS_MODB  = 0x8000
WS_UTF   = 0x100000
WS_STATS = 0x200000
WS_KV    = 0x300000
WS_H1    = 0x400000
WS_O     = 0x800000
WS_X1    = 0xC00000
WS_X1S   = 0x1000000
WS_HH    = 0x1400000
LOG2E = 1.4426950408889634
import struct
def f2h(x): return '0x%08x' % struct.unpack('<I', struct.pack('<f', x))[0]

def srd(K, d, base, off, size):
    if off:
        K.e(f's_add_u32 s{d}, s{base}, {hex(off)}')
        K.e(f's_addc_u32 s{d+1}, s{base+1}, 0')
    else:
        K.e(f's_mov_b32 s{d}, s{base}')
        K.e(f's_mov_b32 s{d+1}, s{base+1}')
    K.e(f's_mov_b32 s{d+2}, {hex(size)}')
    K.e(f's_mov_b32 s{d+3}, 0x00020000')

def guard(K, nwg):
    K.e(f's_cmp_ge_u32 s2, {nwg}')
    K.e(f's_cbranch_scc1 {K.name}_end')

def finish(K):
    K.e(f'{K.name}_end:')
    K.e('s_endpgm')

HEADER = open('cdna_kernels/' + NAME + '.s.ref').read().split('; Override launch')[0]

WS_STAMP = 0x8000000
def stamp(K, i):
    K.e(f's_memtime s[{64+4*i}:{65+4*i}]')
    K.e(f's_memrealtime s[{66+4*i}:{67+4*i}]')
def dump_stamps(K, n, wsbase, kidx=0):
    K.e('@waitall')
    srd(K, 60, wsbase, WS_STAMP + kidx * 0x10000, 0x10000)
    K.e('s_lshl_b32 s59, s2, 2\ns_add_u32 s59, s59, s3\ns_lshl_b32 s59, s59, 6')
    K.e('v_mov_b32 v1, 0')
    for i in range(n):
        K.e(f'v_mov_b32 v2, s{64+4*i}\nv_mov_b32 v3, s{66+4*i}')
        K.e(f'buffer_store_dwordx2 v[2:3], v1, s[60:63], s59 offen offset:{8*i}')
        K.e('s_waitcnt vmcnt(0)')

def perm_table(K, vT, NST, mode, t0, t1, wstep=262144, bstep=4096):
    K.e('s_lshr_b32 s18, s11, 2\ns_and_b32 s19, s11, 3')
    if mode == 'lead':
        K.e('s_add_u32 s18, s18, s19\ns_and_b32 s18, s18, 3')
        K.e(f'v_subrev_u32 v{t0}, s18, v0\nv_and_b32 v{t0}, 3, v{t0}')
        K.e(f'v_sub_u32 v{t1}, v0, v{t0}')
        K.e(f'v_cmp_eq_u32 vcc, 0, v{t0}\nv_cndmask_b32 v{t0}, -1, 3, vcc')
        K.e(f'v_cmp_gt_u32 vcc, {NST - 3}, v{t1}\nv_cndmask_b32 v{t0}, 0, v{t0}, vcc\nv_add_u32 v{t0}, v0, v{t0}')
    elif mode == 'rot':
        K.e('s_lshl_b32 s19, s19, 1\ns_add_u32 s18, s18, s19')
        K.e(f'v_add_u32 v{t0}, s18, v0\nv_and_b32 v{t0}, {NST - 1}, v{t0}')
    else: K.e(f'v_mov_b32 v{t0}, v0')
    K.e(f'v_mul_u32_u24 v{vT}, {wstep}, v{t0}\nv_mul_u32_u24 v{vT+1}, {bstep}, v{t0}')

WS_FLAG = 0x10000
F_O = 0
F_X = 0x800
F_H = 0x1000
class Stamps:
    def __init__(self, K, on, kidx): self.K = K; self.on = on; self.kidx = kidx; self.n = 0
    def __call__(self):
        if not self.on: return
        self.K.e(f'{"s_memtime" if self.on == "cyc" else "s_memrealtime"} s[{66+2*self.n}:{67+2*self.n}]'); self.K.ins[-1].kind = 'salu'; self.n += 1
        assert self.n <= 16
    def dump(self, wsbase):
        if not self.on: return
        K = self.K
        K.e('s_waitcnt vmcnt(0) lgkmcnt(0)')
        srd(K, 60, wsbase, WS_STAMP + self.kidx * 0x10000, 0x10000)
        K.e('s_lshl_b32 s59, s2, 2\ns_add_u32 s59, s59, s3\ns_lshl_b32 s59, s59, 6\nv_mov_b32 v1, 0')
        for i in range(self.n):
            K.e(f'v_mov_b32 v2, s{66+2*i}\nbuffer_store_dword v2, v1, s[60:63], s59 offen offset:{4*i}\ns_waitcnt vmcnt(0)')
def publish(K, sF, soff, vt):
    l = f'{K.name}_pub{K.uid()}'
    K.e(f's_cmp_lg_u32 s3, 0\ns_cbranch_scc1 {l}')
    K.e(f'v_mov_b32 v{vt}, 1\nv_mov_b32 v{vt+1}, 0\ns_mov_b64 exec, 1\nbuffer_store_dword v{vt}, v{vt+1}, {s(sF,4)}, s{soff} offen sc1\ns_mov_b64 exec, -1')
    K.ins[-2].kind = 'other'
    K.e(f'{l}:')
def poll(K, sF, soff, va, vt, scnt):
    l = f'{K.name}_poll{K.uid()}'
    K.e(f's_mov_b32 s{scnt}, 0x40000\n@waitall\n{l}:')
    K.e(f'buffer_load_dword v{vt}, v{va}, {s(sF,4)}, s{soff} offen sc1\ns_sub_u32 s{scnt}, s{scnt}, 1\ns_waitcnt vmcnt(0)')
    K.e(f'v_cmp_ne_u32 vcc, 1, v{vt}\ns_cselect_b64 vcc, 0, vcc\ns_cbranch_vccnz {l}')
```

```python
from common import *
M32 = 'v_mfma_f32_32x32x16_bf16'
class G32:
    nodma = nob = nods = nobar = nomf = wrap = VP = None
    def __init__(self, K, nsteps, kmap, regs, NS, R, lds0=0, srdW=20, srdB=24, sW=40, sB=41, sM=17, kbtot=None,
                 resident=False, bflag='', tag='W'):
        self.__dict__.update(K=K, n=nsteps, kmap=kmap, NS=NS, R=R, lds0=lds0, srdW=srdW, srdB=srdB, sW=sW, sB=sB, sM=sM,
                             kbtot=kbtot or nsteps, resident=resident, bflag=bflag, tag=tag)
        self.NST = nsteps // 4
        self.ACC, self.VD, self.VB, self.VT, self.AA, self.AB = (regs[k] for k in ('acc', 'vd', 'vb', 'vt', 'aa', 'ab'))
        self.NG = (lds0 % 65536 + NS * 16384 + 65535) // 65536
        if resident: assert NS >= self.NST
    def acc(self, ct): return self.ACC + 16 * ct
    def setup_w(self, vlane, swave, sn0, t0, t1):
        K = self.K; VD = self.VD
        K.e(f's_lshl_b32 s18, s{swave}, 16\ns_add_u32 s18, s18, s{sn0}')
        K.e(f'v_bfe_u32 v{t0}, v{vlane}, 4, 1\nv_lshlrev_b32 v{t0}, 2, v{t0}\nv_xor_b32 v{t0}, v{t0}, v{vlane}\nv_and_b32 v{t0}, 7, v{t0}\nv_lshlrev_b32 v{t0}, 4, v{t0}')
        K.e(f'v_lshrrev_b32 v{t1}, 3, v{vlane}\nv_lshl_add_u32 v{t0}, v{t1}, 11, v{t0}\nv_add_u32 v{VD}, s18, v{t0}')
        for i in range(1, 4): K.e(f'v_add_u32 v{VD+i}, {i * (8 * 2048 - 1024)}, v{VD}')
        K.e(f's_lshl_b32 s{self.sM}, s{swave}, 12')
        if self.lds0: K.e(f's_add_u32 s{self.sM}, s{self.sM}, {self.lds0}')
        K.e(f's_mov_b32 m0, s{self.sM}\n' + (f's_mov_b32 s{self.sW}, 0' if self.VP is None else f'v_readlane_b32 s{self.sW}, v{self.VP}, 0'))
        self.QW = [(st, g) for st in range(self.NST) for g in self.dma(st)]
    def setup_b(self, vlane, stt0, t0, t1):
        K = self.K; VB, VT = self.VB, self.VT
        K.e(f's_mul_i32 s18, s{stt0}, {self.kbtot * 1024}')
        K.e(f'v_bfe_u32 v{t0}, v{vlane}, 4, 1\nv_mul_u32_u24 v{t0}, {self.kbtot * 1024}, v{t0}\nv_and_b32 v{t1}, 15, v{vlane}\nv_lshl_add_u32 v{t0}, v{t1}, 4, v{t0}')
        K.e(f'v_lshrrev_b32 v{t1}, 5, v{vlane}\nv_lshl_add_u32 v{t0}, v{t1}, 8, v{t0}\nv_add_u32 v{VB}, s18, v{t0}')
        K.e(f's_mov_b32 s{self.sB}, 0' if self.VP is None else f'v_readlane_b32 s{self.sB}, v{self.VP+1}, 0')
        K.e(f'v_lshlrev_b32 v{t0}, {3 if self.kmap == "nat" else 2}, v{t1}\nv_bfe_u32 v{t1}, v{vlane}, 2, 2\nv_add_u32 v{t0}, v{t0}, v{t1}\nv_lshlrev_b32 v{t0}, 7, v{t0}')
        K.e(f'v_and_b32 v{t1}, 3, v{vlane}\nv_lshl_add_u32 v{t0}, v{t1}, 3, v{t0}\nv_bfe_u32 v{t1}, v{vlane}, 4, 1\nv_lshl_add_u32 v{t0}, v{t1}, 5, v{t0}')
        if self.lds0 >= 65536: K.e(f'v_add_u32 v{t0}, {self.lds0 // 65536 * 65536}, v{t0}')
        K.e(f'v_bfe_u32 v{t1}, v{vlane}, 3, 1\nv_lshl_add_u32 v{VT}, v{t1}, 6, v{t0}\nv_xor_b32 v{VT+1}, 64, v{VT}')
        for g in range(1, self.NG):
            for ct in range(2): K.e(f'v_add_u32 v{VT+2*g+ct}, {65536*g}, v{VT+ct}')
        self.QB = [(t, g) for t in range(self.n) for g in self.bload(t)]
    def dma(self, st):
        L = []
        for i in range(4):
            off = f' offset:{1024*i}' if i else ''
            g = [(f'buffer_load_dwordx4 v{self.VD+i}, {s(self.srdW,4)}, s{self.sW} offen{off} lds', f'{self.tag}{st}')]
            if self.nodma and st >= self.NS: g = []
            if i == 3 and st + 1 < self.NST: g += [f's_add_u32 m0, s{self.sM}, {((st+1) % self.NS) * 16384}', f's_add_u32 s{self.sW}, s{self.sW}, {128*2048}' if self.VP is None else f'v_readlane_b32 s{self.sW}, v{self.VP}, {st+1}'] + ([f's_and_b32 s{self.sW}, s{self.sW}, 0xfffff'] if self.wrap and 'w' in self.wrap else [])
            L.append(g)
        return L
    def bload(self, t):
        L = []
        for kk in range(2):
            o = 1024 * (t % 4) + 512 * kk; off = f' offset:{o}' if o else ''
            g = [(f'buffer_load_dwordx4 {a(self.AB + 8*(t%self.R) + 4*kk, 4)}, v{self.VB}, {s(self.srdB,4)}, s{self.sB} offen{off}{self.bflag}', f'{self.tag}B{t}')]
            if self.nob and t >= self.R: g = []
            if kk == 1 and t % 4 == 3 and t + 1 < self.n: g += [f's_add_u32 s{self.sB}, s{self.sB}, 4096' if self.VP is None else f'v_readlane_b32 s{self.sB}, v{self.VP+1}, {(t+1)//4}'] + ([f's_and_b32 s{self.sB}, s{self.sB}, 0x3fff'] if self.wrap and 'b' in self.wrap else [])
            L.append(g)
        return L
    def areads(self, t):
        st, ks = divmod(t, 4); slot = st % self.NS
        fk, ft = {'nat': (16, 4), 'p16': (8, 16), 'om': (16, 8)}[self.kmap]
        L = []
        for kk in range(2):
            for ct in range(2):
                for tt in range(2):
                    g, off = divmod(self.lds0 % 65536 + slot * 16384 + (ks * 32 + fk * kk + ft * tt) * 128, 65536)
                    L.append((f'ds_read_b64_tr_b16 {a(self.AA + 16*(t%3) + 8*kk + 4*ct + 2*tt, 2)}, v{self.VT + 2*g + ct} offset:{off}', f'A{t}'))
        return L
    def issue_w(self, nst):
        while self.QW and self.QW[0][0] < nst: self.K.e(self.QW.pop(0)[1])
    def issue_b(self, nsteps):
        while self.QB and self.QB[0][0] < nsteps: self.K.e(self.QB.pop(0)[1])
    def issue_mixed(self, nst):
        for st in range(nst):
            self.issue_w(st + 1); self.issue_b(min((st + 1) * 4, self.R))
    def main(self, side=None, bper=3, wper=2, extra=None, start_barrier=True, vfirst=False):
        K = self.K; T = self.n; side = side or {}
        extra = list(extra or [])
        if start_barrier: K.e(f'@waitvm {self.tag}{self.NST - 1 if self.resident else 0}\ns_barrier')
        K.e(self.areads(0) + self.areads(1))
        K.e(f'@wait2 {self.tag}B0 A0')
        for t in range(T):
            slots = []
            for kk in range(2):
                for ct in range(2):
                    d = v(self.acc(ct), 16); c = '0' if t == 0 and kk == 0 else d
                    slots.append([f'{M32} {d}, {a(self.AA + 16*(t%3) + 8*kk + 4*ct, 4)}, {a(self.AB + 8*(t%self.R) + 4*kk, 4)}, {c}'])
            if self.nomf: slots = [['s_nop 1'] for _ in slots]
            newst = (t + 2) % 4 == 0 and t + 2 < T and not self.resident
            rd = self.areads(t + 2) if t + 2 < T else []
            if self.nods == 1: rd = []
            if self.nods == 2: rd = rd[:4]
            if self.nods == 3: rd = [(x[0].replace('_tr_b16', ''), x[1]) for x in rd]
            if self.nods == 4: rd = [(re.sub(r'v4\d offset:\d+', 'v41 offset:%d' % (512 * i), x[0]), x[1]) for i, x in enumerate(rd)]
            vm = []
            while self.QW and len(vm) < wper and (self.QW[0][0] < self.NS or 4 * (self.QW[0][0] - self.NS + 2) - 2 <= t): vm.append(self.QW.pop(0)[1])
            nb = 0
            while self.QB and nb < bper and self.QB[0][0] - self.R + 1 <= t: vm.append(self.QB.pop(0)[1]); nb += 1
            if not self.QW and not self.QB:
                while extra and len(vm) < 3: vm.append(extra.pop(0))
            vs = [[], [], [], []]
            gaps = [1, 2, 3] if newst else [0, 1, 2, 3]
            for k, g in enumerate(vm): vs[gaps[k % len(gaps)]] += g
            if len(vm) > len(gaps):
                vs = [[], [], [], []]
                for k, g in enumerate(vm): vs[gaps[k * len(gaps) // len(vm)]] += g
            if newst:
                slots[0] += [f'@waitvm {self.tag}{(t+2)//4}'] + ([] if self.nobar else ['s_barrier'])
                rs = [[], rd[0:3], rd[3:6], rd[6:8]]
            else: rs = [rd[0:2], rd[2:4], rd[4:6], rd[6:8]]
            if t + 1 < T: slots[3].append(f'@wait2 {self.tag}B{t+1} A{t+1}')
            for g in range(4): slots[g] += (vs[g] + rs[g]) if vfirst else (rs[g] + vs[g])
            if t in side: interleave(slots, side[t], 0, 1, 1)
            K.e(flatten(slots))
        assert not self.QW and not self.QB and not extra
```

```python
from common import *
MF = 'v_mfma_f32_16x16x32_bf16'
class G64:
    VP = None
    def __init__(self, K, nsteps, kmap, regs, NS=4, R=16, lds0=0, srdW=20, srdB=24, sW=40, sB=41, sM=17, kbtot=None, ramp=2):
        self.K = K; self.n = nsteps; self.kmap = kmap; self.NS = NS; self.R = R; self.lds0 = lds0
        self.srdW = srdW; self.srdB = srdB; self.sW = sW; self.sB = sB; self.sM = sM
        self.kbtot = kbtot or nsteps; self.ramp = ramp
        self.ACC = regs['acc']
        self.VD = regs['vd']
        self.VB = regs['vb']
        self.VT = regs['vt']
        self.AA = regs['aa']
        self.AB = regs['ab']
        self.tag = regs.get('tag', 'W'); self.nodma = regs.get('nodma'); self.nob = regs.get('nob')
    def acc(self, mt, nt): return self.ACC + 4 * (2 * mt + nt)
    def setup(self, vlane, swave, sn0, stt0, t0, t1):
        K = self.K; VD, VB, VT = self.VD, self.VB, self.VT
        K.e(f's_lshl_b32 s18, s{swave}, 16\ns_add_u32 s18, s18, s{sn0}')
        for i in range(4):
            if self.kmap == 'nat':
                K.e(f'v_bfe_u32 v{t0}, v{vlane}, 4, 1')
                if i & 1: K.e(f'v_or_b32 v{t0}, 2, v{t0}')
            else:
                K.e(f'v_bfe_u32 v{t0}, v{vlane}, 4, 2')
            K.e(f'v_lshlrev_b32 v{t0}, 1, v{t0}\nv_xor_b32 v{t0}, v{t0}, v{vlane}\nv_and_b32 v{t0}, 7, v{t0}\nv_lshlrev_b32 v{t0}, 4, v{t0}')
            K.e(f'v_lshrrev_b32 v{t1}, 3, v{vlane}\nv_lshl_add_u32 v{t0}, v{t1}, 11, v{t0}')
            K.e(f'v_add_u32 v{t0}, s18, v{t0}')
            K.e(f'v_add_u32 v{VD+i}, {i * (8 * 2048 - 1024)}, v{t0}')
        K.e(f's_lshl_b32 s{self.sM}, s{swave}, 12')
        if self.lds0: K.e(f's_add_u32 s{self.sM}, s{self.sM}, {self.lds0}')
        K.e(f's_mul_i32 s18, s{stt0}, {self.kbtot * 1024}')
        K.e(f'v_lshl_add_u32 v{VB}, v{vlane}, 4, s18\nv_add_u32 v{VB+1}, {self.kbtot * 1024}, v{VB}')
        if self.kmap == 'nat':    K.e(f'v_lshrrev_b32 v{t0}, 4, v{vlane}\nv_lshlrev_b32 v{t0}, 3, v{t0}')
        elif self.kmap == 'p16':  K.e(f'v_lshrrev_b32 v{t0}, 4, v{vlane}\nv_lshlrev_b32 v{t0}, 2, v{t0}')
        else:                     K.e(f'v_lshrrev_b32 v{t0}, 5, v{vlane}\nv_lshlrev_b32 v{t0}, 4, v{t0}\nv_bfe_u32 v{t1}, v{vlane}, 4, 1\nv_lshl_add_u32 v{t0}, v{t1}, 2, v{t0}')
        K.e(f'v_bfe_u32 v{t1}, v{vlane}, 2, 2\nv_add_u32 v{t0}, v{t0}, v{t1}\nv_lshlrev_b32 v{t0}, 7, v{t0}')
        K.e(f'v_and_b32 v{t1}, 3, v{vlane}\nv_lshl_add_u32 v{t0}, v{t1}, 3, v{t0}')
        if self.lds0: K.e(f'v_add_u32 v{t0}, {self.lds0}, v{t0}')
        K.e(f'v_bfe_u32 v{t1}, v{vlane}, 3, 2')
        for mt in range(4):
            K.e(f'v_xor_b32 v{VT+mt}, {mt}, v{t1}\nv_lshl_add_u32 v{VT+mt}, v{VT+mt}, 5, v{t0}')
            for g in range(1, (self.NS + 3) // 4): K.e(f'v_add_u32 v{VT+4*g+mt}, {65536*g}, v{VT+mt}')
        K.e(f's_mov_b32 m0, s{self.sM}\ns_mov_b32 s{self.sW}, 0\ns_mov_b32 s{self.sB}, 0')
        if self.VP is not None: K.e(f'v_readlane_b32 s{self.sW}, v{self.VP}, 0\nv_readlane_b32 s{self.sB}, v{self.VP+1}, 0')
    def dma(self, st):
        L = []
        for i in range(4):
            off = f' offset:{1024*i}' if i else ''
            g = [(f'buffer_load_dwordx4 v{self.VD+i}, {s(self.srdW,4)}, s{self.sW} offen{off} lds', f'{self.tag}{st}')]
            if self.nodma and st >= self.NS: g = ['s_nop 0']
            if i == 3: g += [f's_add_u32 s{self.sW}, s{self.sW}, {128*2048}' if self.VP is None else f'v_readlane_b32 s{self.sW}, v{self.VP}, {st+1}', f's_add_u32 m0, s{self.sM}, {((st+1) % self.NS) * 16384}']
            L.append(g)
        return L
    def bload(self, t):
        L = []
        for nt in range(2):
            off = f' offset:{1024*(t%4)}' if t % 4 else ''
            g = [f'buffer_load_dwordx4 {a(self.AB + 8*(t%self.R) + 4*nt, 4)}, v{self.VB+nt}, {s(self.srdB,4)}, s{self.sB} offen{off}']
            if self.nob and t >= self.R: g = ['s_nop 0']
            if nt == 1 and t % 4 == 3: g.append(f's_add_u32 s{self.sB}, s{self.sB}, 4096' if self.VP is None else f'v_readlane_b32 s{self.sB}, v{self.VP+1}, {(t+1)//4}')
            L.append(g)
        return L
    def areads(self, t):
        st, ks = t // 4, t % 4; slot = st % self.NS
        ttoff = {'nat': 512, 'p16': 2048, 'om': 1024}[self.kmap]
        L = []
        for mt in range(4):
            for tt in range(2):
                off = (slot % 4) * 16384 + ks * 4096 + tt * ttoff
                L.append(f'ds_read_b64_tr_b16 {a(self.AA + 16*(t%2) + 4*mt + 2*tt, 2)}, v{self.VT + 4*(slot//4) + mt} offset:{off}')
        return L
    def vmqueue(self):
        Q = []
        NST = self.n // 4
        for st in range(NST):
            d = self.dma(st)
            for i in range(4):
                Q.append((4 * st - 1, 4 * (st - self.NS) + 3 if st >= self.NS else -1, d[i]))
            for t in range(4 * st, 4 * st + 4):
                for g in self.bload(t): Q.append((t, t - self.R + 1 if t >= self.R else -1, g))
        return Q
    def prologue(self, nst=1, extra=None):
        self.Q = self.vmqueue()
        while self.Q and self.Q[0][0] < 4 * nst - 1 or (self.Q and self.Q[0][0] == 4 * nst - 1 and 'lds' not in str(self.Q[0][2][0])):
            self.K.e(self.Q.pop(0)[2])
        if extra: self.K.e(extra)
    def main(self, side=None, first_c='0', maxper=4):
        K = self.K; T = self.n; NST = T // 4; side = side or {}
        K.e(f'@waitvm {self.tag}0\ns_barrier')
        K.e(self.areads(0))
        for t in range(T):
            st, ks = t // 4, t % 4
            slots = []
            for mt in range(4):
                for k in range(2):
                    nt = k if mt % 2 == 0 else 1 - k
                    d = v(self.acc(mt, nt), 4); c = first_c if t == 0 else d
                    slots.append([f'{MF} {d}, {a(self.AA + 16*(t%2) + 4*mt, 4)}, {a(self.AB + 8*(t%self.R) + 4*nt, 4)}, {c}'])
            pre = []
            if ks == 3 and st + 1 < NST: pre = ['@waitlg all', f'@waitvm {self.tag}{st+1}', 's_barrier']
            if t + 1 < T: interleave(slots, self.areads(t + 1), 0, 1, 1)
            vm = []
            while self.Q and len(vm) < maxper and self.Q[0][1] <= t: vm.append(self.Q.pop(0)[2])
            if vm: interleave(slots, vm, 1, 1, 2 if len(vm) <= 4 else 1)
            if t in side: interleave(slots, side[t], 0, 1, 1)
            K.e(pre); K.e(flatten(slots))
        assert not self.Q
```

```python
from common import *
MF = 'v_mfma_f32_16x16x32_bf16'
class GW:
    nodma = nob = VP = None
    def __init__(self, K, NM, nsteps, kmap, regs, NS, R, lds0=0, srdW=20, srdB=24, sW=40, sB=41, sM=17, kbtot=None,
                 resident=False, bflag='', tag='W'):
        self.__dict__.update(K=K, NM=NM, n=nsteps, kmap=kmap, NS=NS, R=R, lds0=lds0, srdW=srdW, srdB=srdB, sW=sW, sB=sB, sM=sM,
                             kbtot=kbtot or nsteps, resident=resident, bflag=bflag, tag=tag)
        self.RB = 32 * NM
        self.SR = 16384 // self.RB
        self.SPS = self.SR // 32
        self.NST = nsteps // self.SPS
        self.ACC, self.VD, self.VB, self.VT, self.AA, self.AB = (regs[k] for k in ('acc', 'vd', 'vb', 'vt', 'aa', 'ab'))
        self.NG = (lds0 % 65536 + NS * 16384 + 65535) // 65536
        if resident: assert NS >= self.NST
    def acc(self, mt, nt): return self.ACC + 4 * (2 * mt + nt)
    def setup_w(self, vlane, swave, sn0, t0, t1, srow0=None):
        K = self.K; VD = self.VD; RI = 1024 // self.RB
        sh = {8: 3, 4: 4}[RI]
        K.e(f's_lshl_b32 s18, s{swave}, {11 + (4 * RI).bit_length() - 1}\ns_add_u32 s18, s18, s{sn0}')
        for i in range(4):
            if self.NM == 4:
                if self.kmap == 'nat':
                    K.e(f'v_bfe_u32 v{t0}, v{vlane}, 4, 1')
                    if i & 1: K.e(f'v_or_b32 v{t0}, 2, v{t0}')
                else: K.e(f'v_bfe_u32 v{t0}, v{vlane}, 4, 2')
            else:
                assert self.kmap == 'p16'
                K.e(f'v_lshrrev_b32 v{t0}, 4, v{vlane}')
                if i & 1: K.e(f'v_or_b32 v{t0}, 4, v{t0}')
            K.e(f'v_lshlrev_b32 v{t0}, 1, v{t0}\nv_xor_b32 v{t0}, v{t0}, v{vlane}\nv_and_b32 v{t0}, {2*self.NM-1}, v{t0}\nv_lshlrev_b32 v{t0}, 4, v{t0}')
            K.e(f'v_lshrrev_b32 v{t1}, {sh}, v{vlane}\nv_lshl_add_u32 v{t0}, v{t1}, 11, v{t0}')
            K.e(f'v_add_u32 v{t0}, s18, v{t0}')
            K.e(f'v_add_u32 v{VD+i}, {i * (RI * 2048 - 1024)}, v{t0}')
        K.e(f's_lshl_b32 s{self.sM}, s{swave}, 12')
        if self.lds0: K.e(f's_add_u32 s{self.sM}, s{self.sM}, {self.lds0}')
        K.e(f's_mov_b32 m0, s{self.sM}\ns_mov_b32 s{self.sW}, ' + (f's{srow0}' if srow0 is not None else '0'))
        if self.VP is not None: K.e(f'v_readlane_b32 s{self.sW}, v{self.VP}, 0')
        self.QW = [(st, g) for st in range(self.NST) for g in self.dma(st)]
    def setup_b(self, vlane, stt0, t0, t1, skb0=None, sflip=None):
        K = self.K; VB, VT = self.VB, self.VT
        K.e(f's_mul_i32 s18, s{stt0}, {self.kbtot * 1024}')
        K.e(f'v_lshl_add_u32 v{VB}, v{vlane}, 4, s18\nv_add_u32 v{VB+1}, {self.kbtot * 1024}, v{VB}')
        K.e(f's_mov_b32 s{self.sB}, ' + (f's{skb0}' if skb0 is not None else '0'))
        if self.kmap == 'nat':    K.e(f'v_lshrrev_b32 v{t0}, 4, v{vlane}\nv_lshlrev_b32 v{t0}, 3, v{t0}')
        elif self.kmap == 'p16':  K.e(f'v_lshrrev_b32 v{t0}, 4, v{vlane}\nv_lshlrev_b32 v{t0}, 2, v{t0}')
        else:                     K.e(f'v_lshrrev_b32 v{t0}, 5, v{vlane}\nv_lshlrev_b32 v{t0}, 4, v{t0}\nv_bfe_u32 v{t1}, v{vlane}, 4, 1\nv_lshl_add_u32 v{t0}, v{t1}, 2, v{t0}')
        K.e(f'v_bfe_u32 v{t1}, v{vlane}, 2, 2\nv_add_u32 v{t0}, v{t0}, v{t1}\nv_lshlrev_b32 v{t0}, {self.RB.bit_length() - 1}, v{t0}')
        K.e(f'v_and_b32 v{t1}, 3, v{vlane}\nv_lshl_add_u32 v{t0}, v{t1}, 3, v{t0}')
        if self.lds0 >= 65536: K.e(f'v_add_u32 v{t0}, {self.lds0 // 65536 * 65536}, v{t0}')
        K.e(f'v_bfe_u32 v{t1}, v{vlane}, 3, 2' if self.NM == 4 else f'v_bfe_u32 v{t1}, v{vlane}, 2, 3')
        if sflip is not None: K.e(f'v_xor_b32 v{t1}, s{sflip}, v{t1}')
        for mt in range(self.NM):
            K.e(f'v_xor_b32 v{VT+mt}, {mt}, v{t1}\nv_lshl_add_u32 v{VT+mt}, v{VT+mt}, 5, v{t0}')
            for g in range(1, self.NG): K.e(f'v_add_u32 v{VT+self.NM*g+mt}, {65536*g}, v{VT+mt}')
        if self.VP is not None: K.e(f'v_readlane_b32 s{self.sB}, v{self.VP+1}, 0')
        self.QB = [(t, g) for t in range(self.n) for g in self.bload(t)]
    def dma(self, st):
        L = []
        for i in range(4):
            off = f' offset:{1024*i}' if i else ''
            g = [(f'buffer_load_dwordx4 v{self.VD+i}, {s(self.srdW,4)}, s{self.sW} offen{off} lds', f'{self.tag}{st}')]
            if self.nodma and st >= self.NS: g = ['s_nop 0']
            if i == 3 and st + 1 < self.NST: g += [f's_add_u32 m0, s{self.sM}, {((st+1) % self.NS) * 16384}', f's_add_u32 s{self.sW}, s{self.sW}, {self.SR*2048}' if self.VP is None else f'v_readlane_b32 s{self.sW}, v{self.VP}, {st+1}']
            L.append(g)
        return L
    def bload(self, t):
        L = []
        for nt in range(2):
            off = f' offset:{1024*(t%4)}' if t % 4 else ''
            g = [(f'buffer_load_dwordx4 {a(self.AB + 8*(t%self.R) + 4*nt, 4)}, v{self.VB+nt}, {s(self.srdB,4)}, s{self.sB} offen{off}{self.bflag}', f'{self.tag}B{t}')]
            if self.nob and t >= self.R: g = ['s_nop 0']
            if nt == 1 and t % 4 == 3 and t + 1 < self.n: g.append(f's_add_u32 s{self.sB}, s{self.sB}, 4096' if self.VP is None else f'v_readlane_b32 s{self.sB}, v{self.VP+1}, {(t+1)//4}')
            L.append(g)
        return L
    def areads(self, t):
        st, ks = divmod(t, self.SPS); slot = st % self.NS
        ttoff = {'nat': 4, 'p16': 16, 'om': 8}[self.kmap] * self.RB
        L = []
        for mt in range(self.NM):
            for tt in range(2):
                g, off = divmod(self.lds0 % 65536 + slot * 16384 + ks * 32 * self.RB + tt * ttoff, 65536)
                L.append((f'ds_read_b64_tr_b16 {a(self.AA + 4*self.NM*(t%3) + 4*mt + 2*tt, 2)}, v{self.VT + self.NM*g + mt} offset:{off}', f'A{t}'))
        return L
    def issue_w(self, nst):
        while self.QW and self.QW[0][0] < nst: self.K.e(self.QW.pop(0)[1])
    def issue_b(self, nsteps):
        while self.QB and self.QB[0][0] < nsteps: self.K.e(self.QB.pop(0)[1])
    def issue_mixed(self, nst):
        for st in range(nst):
            self.issue_w(st + 1); self.issue_b(min((st + 1) * self.SPS, self.R))
    def main(self, side=None, first_c='0', bper=3, wper=None, extra=None, start_barrier=True):
        K = self.K; T = self.n; S = self.SPS; side = side or {}; NG2 = 2 * self.NM
        wper = wper or 4 // S + 1
        extra = list(extra or [])
        if start_barrier: K.e(f'@waitvm {self.tag}{self.NST - 1 if self.resident else (1 // S)}\ns_barrier')
        K.e(self.areads(0) + self.areads(1))
        K.e(f'@waitvm {self.tag}B0\n@waitlg A0')
        for t in range(T):
            slots = []
            for mt in range(self.NM):
                for k in range(2):
                    nt = k if mt % 2 == 0 else 1 - k
                    d = v(self.acc(mt, nt), 4); c = first_c if t == 0 else d
                    slots.append([f'{MF} {d}, {a(self.AA + 4*self.NM*(t%3) + 4*mt, 4)}, {a(self.AB + 8*(t%self.R) + 4*nt, 4)}, {c}'])
            newst = (t + 2) % S == 0 and t + 2 < T and not self.resident and (t + 2) // S > 1 // S
            rd = self.areads(t + 2) if t + 2 < T else []
            if newst:
                slots[0].append(f'@waitvm {self.tag}{(t+2)//S}'); slots[1].append('s_barrier')
                interleave(slots, rd[:-2], 2, 1, 1); interleave(slots, rd[-2:], NG2 - 3, 1, 2)
            else: interleave(slots, rd, 0, 1, 1)
            if t + 1 < T: slots[self.NM - 1] += [f'@wait2 {self.tag}B{t+1} A{t+1}']
            vm = []
            while self.QW and len(vm) < wper and (self.QW[0][0] < self.NS or S * (self.QW[0][0] - self.NS + 2) - 2 + (0 if S == 1 else 0) <= t - (0 if newst or S * (self.QW[0][0] - self.NS + 2) - 2 < t else 1)):
                vm.append(self.QW.pop(0)[1])
            nb = 0
            while self.QB and nb < bper and self.QB[0][0] - self.R + 1 <= t: vm.append(self.QB.pop(0)[1]); nb += 1
            if not self.QW and not self.QB:
                while extra and len(vm) < 3: vm.append(extra.pop(0))
            if vm:
                gaps = [g for g in range(2, NG2) if g != self.NM - 1]
                stp = max(1, len(gaps) // len(vm))
                for k, g in enumerate(vm): slots[gaps[min(k * stp, len(gaps) - 1)]] += g
            if t in side: interleave(slots, side[t], 0, 1, 1)
            K.e(flatten(slots))
        assert not self.QW and not self.QB and not extra
```

```python
from gemm64 import *
from gw import GW

def tile_ids(K):
    K.e('v_lshrrev_b32 v1, 6, v0\nv_readfirstlane_b32 s3, v1\nv_and_b32 v0, 63, v0')
    K.e('s_and_b32 s10, s2, 7\ns_lshr_b32 s11, s2, 3')
    K.e('s_lshr_b32 s12, s10, 1\ns_lshl_b32 s12, s12, 2\ns_and_b32 s13, s11, 3\ns_add_u32 s12, s12, s13')
    K.e('s_and_b32 s13, s10, 1\ns_lshl_b32 s13, s13, 3\ns_lshr_b32 s14, s11, 2\ns_add_u32 s13, s13, s14')
    K.e('s_lshl_b32 s14, s13, 7')
    K.e('s_lshl_b32 s15, s12, 3\ns_lshl_b32 s16, s3, 1\ns_add_u32 s15, s15, s16')

def unpack(dst, src):
    return [f'v_lshlrev_b32 v{dst}, 16, v{src}', f'v_and_b32 v{dst+1}, 0xffff0000, v{src}']

def l2touch(K, G, nsteps, opt, V0):
    if not opt.get('tch'): return {}
    D = opt['tch']; fl = opt.get('tfl', ' sc1')
    K.e('s_lshr_b32 s18, s11, 2\ns_lshl_b32 s19, s12, 3\ns_add_u32 s18, s18, s19')
    K.e(f's_mul_i32 s18, s18, {nsteps*1024}\ns_lshl_b32 s19, s3, 12\ns_add_u32 s18, s18, s19\nv_lshl_add_u32 v{V0}, v0, 6, s18')
    K.e('s_and_b32 s18, s11, 3\ns_lshl_b32 s18, s18, 2\ns_add_u32 s18, s18, s3\ns_lshl_b32 s18, s18, 16\ns_add_u32 s18, s18, s14')
    K.e(f'v_lshrrev_b32 v1, 1, v0\nv_lshlrev_b32 v1, 11, v1\nv_and_b32 v2, 1, v0\nv_lshl_add_u32 v1, v2, 6, v1\nv_add_u32 v{V0+1}, s18, v1')
    side = {}; d = V0 + 2
    for c in range(opt.get('tc0', 0), nsteps // 16):
        L = [f's_mov_b32 s62, {c*16384}', f'buffer_load_dword v{d}, v{V0}, {s(G.srdB,4)}, s62 offen{fl}',
             f's_mov_b32 s63, {c*16*32*2048}', f'buffer_load_dword v{d+1}, v{V0+1}, {s(G.srdW,4)}, s63 offen{fl}']
        d += 2
        t = 16 * c - D
        if t < 0: K.e(L)
        else: side[t] = L
    return side

def build_k46(which, name=None, NS=4, R=16, opt=None):
    opt = opt or {}
    down = which == 6
    name = name or f'k{which}_kernel'
    K = Kernel(name)
    guard(K, opt.get('nwg', 256))
    if opt.get('stamp'): stamp(K, 0)
    K.e(f's_load_dwordx2 s[4:5], s[0:1], {KA["wd" if down else "wo"]}')
    K.e(f's_load_dwordx2 s[6:7], s[0:1], {KA["out" if down else "x"]}')
    K.e(f's_load_dwordx2 s[8:9], s[0:1], {KA["ws"]}')
    tile_ids(K)
    nsteps = 112 if down else 32
    gw = opt.get('gw'); NS = opt.get('NS', NS); R = opt.get('R', R)
    fk = opt.get('fake', '')
    K.e('s_mov_b32 s60, s14\ns_mov_b32 s61, s15')
    if 'w' in fk: K.e('s_and_b32 s60, s10, 1\ns_lshl_b32 s60, s60, 10')
    if 'b' in fk: K.e('s_lshr_b32 s61, s10, 1\ns_lshl_b32 s61, s61, 5\ns_lshl_b32 s16, s3, 1\ns_add_u32 s61, s61, s16')
    if gw:
        G = GW(K, 4, nsteps, 'p16' if down else 'om', dict(acc=4, vd=36, vb=40, vt=42, aa=0, ab=48), NS, R, resident=NS * 4 >= nsteps)
        G.nodma = opt.get('nodma'); G.nob = opt.get('nob')
        if opt.get('perm'): G.VP = 160; perm_table(K, G.VP, nsteps // 4, opt['perm'], 1, 2)
        G.setup_w(0, 3, 60, 1, 2); G.setup_b(0, 61, 1, 2)
    else:
        regs = dict(acc=4, vd=36, vb=40, vt=42, aa=0, ab=32, nodma=opt.get('nodma'), nob=opt.get('nob'))
        G = G64(K, nsteps, 'p16' if down else 'om', regs, NS=NS, R=R)
        if opt.get('perm'): G.VP = 160; perm_table(K, G.VP, nsteps // 4, opt['perm'], 1, 2)
        G.setup(0, 3, 60, 61, 1, 2)
    srd(K, 20, 4, 0, nsteps * 32 * 2048)
    srd(K, 24, 8, WS_HH if down else WS_O, 128 * nsteps * 1024)
    tch = l2touch(K, G, nsteps, opt, 128)
    if gw: G.issue_mixed(opt.get('pro', 2))
    else: G.prologue(opt.get('pro', 2))
    VX = 52
    VG = 68
    VC = 84
    VA = 50; VA2 = 51
    srd(K, 28, 6, 0, 2048 * 2048)
    srd(K, 32, 8, WS_MOD, 6144 * 4)
    srd(K, 36, 8, WS_X1, 0x400000)
    pre = []
    pre += [f'v_and_b32 v1, 15, v0', 'v_lshlrev_b32 v1, 11, v1', 'v_bfe_u32 v2, v0, 4, 1', 'v_lshl_add_u32 v1, v2, 5, v1',
            'v_lshrrev_b32 v2, 5, v0', 'v_lshl_add_u32 v1, v2, 4, v1', 's_lshl_b32 s18, s15, 15', 's_add_u32 s18, s18, s14',
            f'v_add_u32 v{VA}, s18, v1', 's_mov_b32 s42, 32768',
            's_lshl_b32 s18, s15, 15', 's_lshl_b32 s19, s13, 11', 's_add_u32 s18, s18, s19', f'v_lshl_add_u32 v{VA2}, v0, 4, s18',
            'v_lshrrev_b32 v2, 4, v0', 'v_lshlrev_b32 v2, 4, v2', 's_lshl_b32 s19, s14, 1', 'v_add_u32 v3, s19, v2']
    ld = []
    for nt in range(2):
        for aa in range(2):
            so = 's42' if nt else '0'
            if down: ld.append(f'buffer_load_dwordx4 {v(VX + 8*nt + 4*aa, 4)}, v{VA2}, s[36:39], {so} offen offset:{1024*aa}')
            else:    ld.append(f'buffer_load_dwordx4 {v(VX + 8*nt + 4*aa, 4)}, v{VA}, s[28:31], {so} offen offset:{64*aa}')
    pre.append('s_mov_b32 s43, %d' % ((5 if down else 2) * 4096))
    for mt in range(4): ld.append(f'buffer_load_dwordx4 {v(VG + 4*mt, 4)}, v3, s[32:35], s43 offen offset:{64*mt}')
    if not down:
        pre.append('s_mov_b32 s44, %d' % (4 * 4096))
        for mt in range(4): ld.append(f'buffer_load_dwordx4 {v(VC + 4*mt, 4)}, v3, s[32:35], s44 offen offset:{64*mt}')
    K.e(pre)
    side = {}
    t0 = nsteps - 20
    for i, l in enumerate(ld): side[t0 + i] = [l]
    for t, l in tch.items(): side[t] = side.get(t, []) + l
    if opt.get('stamp'): K.e('@waitvm W0'); stamp(K, 1)
    if gw: G.main(side, bper=opt.get('bper', 3), wper=opt.get('wper'))
    else: G.main(side, maxper=opt.get('maxper', 5))
    if opt.get('stamp'): stamp(K, 2)
    T = 100
    if down:
        for nt in range(2):
            for aa in range(2):
                X = VX + 8 * nt + 4 * aa
                for e in range(2):
                    mt = 2 * aa + e; A0 = G.acc(mt, nt)
                    K.e(unpack(T, X + 2 * e) + unpack(T + 2, X + 2 * e + 1))
                    for j in (0, 2): K.e(f'v_pk_fma_f32 {v(A0+j,2)}, {v(A0+j,2)}, {v(VG+4*mt+j,2)}, {v(T+j,2)}')
                    K.e(f'v_cvt_pk_bf16_f32 v{X+2*e}, v{A0}, v{A0+1}\nv_cvt_pk_bf16_f32 v{X+2*e+1}, v{A0+2}, v{A0+3}')
                K.e(f'v_permlane16_swap_b32 v{X}, v{X+2}\nv_permlane16_swap_b32 v{X+1}, v{X+3}')
                so = 's42' if nt else '0'
                K.e(f'buffer_store_dwordx4 {v(X,4)}, v{VA}, s[28:31], {so} offen offset:{64*aa}')
    else:
        srd(K, 44, 8, WS_X1S, 0x400000)
        srd(K, 48, 8, WS_STATS, 128 * 16 * 128)
        S = 108
        P = 116
        for nt in range(2):
            for aa in range(2):
                X = VX + 8 * nt + 4 * aa; PP = P + 4 * aa
                K.e(f'v_permlane16_swap_b32 v{X}, v{X+2}\nv_permlane16_swap_b32 v{X+1}, v{X+3}')
                for e in range(2):
                    mt = 2 * aa + e; A0 = G.acc(mt, nt)
                    K.e(unpack(T, X + 2 * e) + unpack(T + 2, X + 2 * e + 1))
                    for j in (0, 2): K.e(f'v_pk_fma_f32 {v(A0+j,2)}, {v(A0+j,2)}, {v(VG+4*mt+j,2)}, {v(T+j,2)}')
                    K.e(f'v_cvt_pk_bf16_f32 v{X+2*e}, v{A0}, v{A0+1}\nv_cvt_pk_bf16_f32 v{X+2*e+1}, v{A0+2}, v{A0+3}')
                    for j in (0, 2):
                        if mt == 0 and j == 0:
                            K.e(f'v_mov_b32 v{S+4*nt}, v{A0}\nv_mov_b32 v{S+4*nt+1}, v{A0+1}')
                            K.e(f'v_pk_mul_f32 {v(S+4*nt+2,2)}, {v(A0,2)}, {v(A0,2)}')
                        else:
                            K.e(f'v_pk_add_f32 {v(S+4*nt,2)}, {v(S+4*nt,2)}, {v(A0+j,2)}')
                            K.e(f'v_pk_fma_f32 {v(S+4*nt+2,2)}, {v(A0+j,2)}, {v(A0+j,2)}, {v(S+4*nt+2,2)}')
                        K.e(f'v_pk_mul_f32 {v(T+j,2)}, {v(A0+j,2)}, {v(VC+4*mt+j,2)}')
                    K.e(f'v_cvt_pk_bf16_f32 v{PP+2*e}, v{T}, v{T+1}\nv_cvt_pk_bf16_f32 v{PP+2*e+1}, v{T+2}, v{T+3}')
                so = 's42' if nt else '0'
                K.e(f'buffer_store_dwordx4 {v(PP,4)}, v{VA2}, s[44:47], {so} offen offset:{1024*aa}')
                K.e(f'buffer_store_dwordx4 {v(X,4)}, v{VA2}, s[36:39], {so} offen offset:{1024*aa}')
        for nt in range(2):
            K.e(f'v_add_f32 v{S+4*nt}, v{S+4*nt}, v{S+4*nt+1}\nv_add_f32 v{S+4*nt+1}, v{S+4*nt+2}, v{S+4*nt+3}')
        K.e(f'v_permlane32_swap_b32 v{S}, v{S+4}\nv_permlane32_swap_b32 v{S+1}, v{S+5}')
        K.e(f'v_add_f32 v{S}, v{S}, v{S+4}\nv_add_f32 v{S+1}, v{S+1}, v{S+5}')
        K.e(f'v_mov_b32 v{S+2}, v{S}\nv_mov_b32 v{S+3}, v{S+1}')
        K.e(f'v_permlane16_swap_b32 v{S}, v{S+2}\nv_permlane16_swap_b32 v{S+1}, v{S+3}')
        K.e(f'v_add_f32 v{S}, v{S}, v{S+2}\nv_add_f32 v{S+1}, v{S+1}, v{S+3}')
        K.e('v_and_b32 v1, 15, v0\nv_lshlrev_b32 v1, 3, v1\nv_lshrrev_b32 v2, 5, v0\nv_lshl_add_u32 v1, v2, 11, v1')
        K.e('v_bfe_u32 v2, v0, 4, 1\nv_lshl_add_u32 v1, v2, 30, v1')
        K.e('s_lshl_b32 s18, s15, 11\ns_lshl_b32 s19, s13, 7\ns_add_u32 s18, s18, s19')
        K.e(f'buffer_store_dwordx2 {v(S,2)}, v1, s[48:51], s18 offen')
    if opt.get('stamp'):
        stamp(K, 3); K.e('@waitall'); stamp(K, 4); dump_stamps(K, 5, 8, opt.get('kidx', 0))
    finish(K)
    return K, (name, 256, 256, NS * 16384)
```

```python
from g32 import *
from k46 import tile_ids, unpack, l2touch
def build_k46n(which, name=None, opt=None):
    opt = opt or {}
    down = which == 6
    NS = opt.get('NS', 4); R = opt.get('R', 16)
    name = name or f'k{which}_kernel'
    K = Kernel(name)
    guard(K, 256)
    if opt.get('stamp'): stamp(K, 0)
    K.e(f's_load_dwordx2 s[4:5], s[0:1], {KA["wd" if down else "wo"]}')
    K.e(f's_load_dwordx2 s[6:7], s[0:1], {KA["out" if down else "x"]}')
    K.e(f's_load_dwordx2 s[8:9], s[0:1], {KA["ws"]}')
    tile_ids(K)
    nsteps = 112 if down else 32
    G = G32(K, nsteps, 'p16' if down else 'om', dict(acc=4, vd=36, vb=40, vt=42, aa=0, ab=48), NS, R, resident=NS * 4 >= nsteps)
    G.nodma = opt.get('nodma'); G.nob = opt.get('nob'); G.nods = opt.get('nods'); G.nobar = opt.get('nobar'); G.nomf = opt.get('nomf'); G.wrap = opt.get('wrap')
    K.e('v_lshlrev_b32 v41, 3, v0')
    fk = opt.get('fake', '')
    K.e('s_mov_b32 s60, s14\ns_mov_b32 s61, s15')
    if 'w' in fk: K.e('s_and_b32 s60, s10, 1\ns_lshl_b32 s60, s60, 10')
    if 'b' in fk: K.e('s_lshr_b32 s61, s10, 1\ns_lshl_b32 s61, s61, 5\ns_lshl_b32 s16, s3, 1\ns_add_u32 s61, s61, s16')
    if 'x' in fk: K.e('s_xor_b32 s60, s60, 128')
    if opt.get('perm'): G.VP = 160; perm_table(K, G.VP, nsteps // 4, opt['perm'], 1, 2)
    G.setup_w(0, 3, 60, 1, 2)
    srd(K, 20, 4, 0, nsteps * 32 * 2048)
    G.issue_w(1)
    G.setup_b(0, 61, 1, 2)
    srd(K, 24, 8, WS_HH if down else WS_O, 128 * nsteps * 1024)
    G.issue_mixed(opt.get('pro', 2))
    tch = l2touch(K, G, nsteps, opt, 144)
    VX = 48; VG = 64; VC = 96; VA = 46; VA2 = 47
    srd(K, 28, 6, 0, 2048 * 2048)
    srd(K, 32, 8, WS_MOD, 6144 * 4)
    srd(K, 36, 8, WS_X1, 0x400000)
    K.e('v_and_b32 v1, 31, v0\nv_lshlrev_b32 v1, 11, v1\nv_lshrrev_b32 v2, 5, v0\nv_lshl_add_u32 v1, v2, 4, v1')
    K.e(f's_lshl_b32 s18, s15, 15\ns_add_u32 s19, s18, s14\nv_add_u32 v{VA}, s19, v1')
    K.e('s_lshl_b32 s19, s14, 1\nv_lshl_add_u32 v3, v2, 4, s19')
    K.e('v_bfe_u32 v1, v0, 4, 1\nv_lshlrev_b32 v1, 15, v1\nv_lshl_add_u32 v1, v2, 8, v1\nv_and_b32 v2, 15, v0\nv_lshl_add_u32 v1, v2, 4, v1')
    K.e(f's_lshl_b32 s19, s13, 11\ns_add_u32 s18, s18, s19\nv_add_u32 v{VA2}, s18, v1')
    ld = []
    for ct in range(2):
        for e in range(2):
            if down: ld.append([f'buffer_load_dwordx4 {v(VX + 8*ct + 4*e, 4)}, v{VA2}, s[36:39], 0 offen offset:{1024*ct + 512*e}'])
            else:    ld.append([f'buffer_load_dwordx4 {v(VX + 8*ct + 4*e, 4)}, v{VA}, s[28:31], 0 offen offset:{64*ct + 32*e}'])
    K.e('s_mov_b32 s43, %d' % ((5 if down else 2) * 4096))
    for i in range(8): ld.append([f'buffer_load_dwordx4 {v(VG + 4*i, 4)}, v3, s[32:35], s43 offen offset:{32*i}'])
    if not down:
        K.e('s_mov_b32 s44, %d' % (4 * 4096))
        for i in range(8): ld.append([f'buffer_load_dwordx4 {v(VC + 4*i, 4)}, v3, s[32:35], s44 offen offset:{32*i}'])
    if opt.get('stamp'): K.e('@waitvm W0'); stamp(K, 1)
    G.main(tch, bper=opt.get('bper', 3), wper=opt.get('wper', 2), extra=ld, vfirst=opt.get('vfirst'))
    if opt.get('stamp'): stamp(K, 2)
    T = 128
    if not down:
        srd(K, 44, 8, WS_X1S, 0x400000)
        srd(K, 48, 8, WS_STATS, 128 * 16 * 128)
    S = 132; P = 136
    for ct in range(2):
        for e in range(2):
            X = VX + 8 * ct + 4 * e; PP = P + 4 * e
            swap = f'v_permlane32_swap_b32 v{X}, v{X+2}\nv_permlane32_swap_b32 v{X+1}, v{X+3}'
            if not down: K.e(swap)
            for u in range(2):
                i = 4 * ct + 2 * e + u; A0 = G.acc(0) + 4 * i
                K.e(unpack(T, X + 2 * u) + unpack(T + 2, X + 2 * u + 1))
                for j in (0, 2): K.e(f'v_pk_fma_f32 {v(A0+j,2)}, {v(A0+j,2)}, {v(VG+4*i+j,2)}, {v(T+j,2)}')
                K.e(f'v_cvt_pk_bf16_f32 v{X+2*u}, v{A0}, v{A0+1}\nv_cvt_pk_bf16_f32 v{X+2*u+1}, v{A0+2}, v{A0+3}')
                if down: continue
                for j in (0, 2):
                    if i == 0 and j == 0: K.e(f'v_mov_b32 v{S}, v{A0}\nv_mov_b32 v{S+1}, v{A0+1}\nv_pk_mul_f32 {v(S+2,2)}, {v(A0,2)}, {v(A0,2)}')
                    else: K.e(f'v_pk_add_f32 {v(S,2)}, {v(S,2)}, {v(A0+j,2)}\nv_pk_fma_f32 {v(S+2,2)}, {v(A0+j,2)}, {v(A0+j,2)}, {v(S+2,2)}')
                    K.e(f'v_pk_mul_f32 {v(T+j,2)}, {v(A0+j,2)}, {v(VC+4*i+j,2)}')
                K.e(f'v_cvt_pk_bf16_f32 v{PP+2*u}, v{T}, v{T+1}\nv_cvt_pk_bf16_f32 v{PP+2*u+1}, v{T+2}, v{T+3}')
            if down:
                K.e(swap)
                K.e(f'buffer_store_dwordx4 {v(X,4)}, v{VA}, s[28:31], 0 offen offset:{64*ct + 32*e}')
            else:
                K.e(f'buffer_store_dwordx4 {v(PP,4)}, v{VA2}, s[44:47], 0 offen offset:{1024*ct + 512*e}')
                K.e(f'buffer_store_dwordx4 {v(X,4)}, v{VA2}, s[36:39], 0 offen offset:{1024*ct + 512*e}')
    if not down:
        K.e(f'v_add_f32 v{S}, v{S}, v{S+1}\nv_add_f32 v{S+1}, v{S+2}, v{S+3}\nv_mov_b32 v{S+2}, v{S}\nv_mov_b32 v{S+3}, v{S+1}')
        K.e(f'v_permlane32_swap_b32 v{S}, v{S+2}\nv_permlane32_swap_b32 v{S+1}, v{S+3}')
        K.e(f'v_add_f32 v{S}, v{S}, v{S+2}\nv_add_f32 v{S+1}, v{S+1}, v{S+3}')
        K.e('v_and_b32 v1, 15, v0\nv_lshlrev_b32 v1, 3, v1\nv_bfe_u32 v2, v0, 4, 1\nv_lshl_add_u32 v1, v2, 11, v1')
        K.e('v_lshrrev_b32 v2, 5, v0\nv_lshl_add_u32 v1, v2, 30, v1')
        K.e('s_lshl_b32 s18, s15, 11\ns_lshl_b32 s19, s13, 7\ns_add_u32 s18, s18, s19')
        K.e(f'buffer_store_dwordx2 {v(S,2)}, v1, s[48:51], s18 offen')
    if opt.get('stamp'):
        stamp(K, 3); K.e('@waitall'); stamp(K, 4); dump_stamps(K, 5, 8, opt.get('kidx', 0))
    finish(K)
    return K, (name, 256, 256, NS * 16384)
```

```python
import sys
from mk import onefile
from k1 import build_k1
from k2 import build_k2
from k3 import build_k3
from k46 import build_k46
from k5 import build_k5
from k46n import build_k46n
from common import NAME
def full(path, o=None):
    o = o or {}
    def op(i, **kw):
        d = dict(kw); d.update(o.get(f'k{i}', {}))
        if o.get('stamp'): d.update(stamp=1, kidx=i - 1)
        return d
    parts = [build_k1(opt=op(1)), build_k2(opt=op(2)), build_k3(opt=op(3, un=2, perm='lead')),
             build_k46(4, opt=op(4, perm='lead')), build_k5(NS=4, R=6, opt=op(5)), build_k46(6, opt=op(6, perm='lead'))]
    if o.get('n32'): parts[3:] = [build_k46n(4, opt=op(4)), build_k5(NS=4, R=6, opt=op(5, om=1)), build_k46n(6, opt=op(6))]
    for i, pt in enumerate(parts): pt[0].stsuffix = o.get('st', {}).get(i + 1, '')
    for i, pt in enumerate(parts): pt[0].align = o.get('al', {3: 'all'}).get(i + 1, o.get('align'))
    return onefile(path, parts)
if __name__ == '__main__':
    t = full('cdna_kernels/' + NAME + '.s')
    print(len(t))
```

```python
import re

def v(i, n=1): return f'v{i}' if n == 1 else f'v[{i}:{i+n-1}]'
def a(i, n=1): return f'a{i}' if n == 1 else f'a[{i}:{i+n-1}]'
def s(i, n=1): return f's{i}' if n == 1 else f's[{i}:{i+n-1}]'

_reg = re.compile(r'^(-|\|)?(abs\()?([vas])(\d+|\[(\d+):(\d+)\])\)?\|?$')
def regs_of(tok):
    tok = tok.strip()
    if tok in ('vcc',): return {('s', 106), ('s', 107)}
    if tok == 'vcc_lo': return {('s', 106)}
    if tok == 'vcc_hi': return {('s', 107)}
    if tok == 'exec': return {('s', 126), ('s', 127)}
    if tok == 'exec_lo': return {('s', 126)}
    if tok == 'exec_hi': return {('s', 127)}
    if tok == 'm0': return {('s', 124)}
    m = _reg.match(tok)
    if not m: return set()
    c = m.group(3)
    if m.group(5) is not None:
        return {(c, i) for i in range(int(m.group(5)), int(m.group(6)) + 1)}
    return {(c, int(m.group(4)))}

TRANS = ('v_exp_f32', 'v_log_f32', 'v_rcp_f32', 'v_rsq_f32', 'v_sqrt_f32', 'v_sin_f32', 'v_cos_f32')
VCC = {('s', 106), ('s', 107)}
EXEC = {('s', 126), ('s', 127)}
M0 = {('s', 124)}
DPPW = ('row_shr', 'row_shl', 'row_ror', 'quad_perm', 'row_mirror', 'row_half_mirror', 'row_bcast', 'row_newbcast', 'wave_')

class Ins:
    __slots__ = ('text', 'op', 'defs', 'uses', 'kind', 'tag', 'passes', 'A', 'B', 'C', 'dpp', 'wide', 'lds', 'pseudo', 'arg')
    def __init__(self, text, tag=None):
        self.text = text; self.tag = tag
        self.defs = set(); self.uses = set(); self.kind = 'other'; self.passes = 0
        self.A = self.B = self.C = set(); self.dpp = False; self.wide = False; self.lds = False
        self.pseudo = None; self.arg = None
        t = text.split(';')[0].strip()
        if t.startswith('@'):
            p = t[1:].split(None, 1); self.pseudo = p[0]; self.arg = p[1] if len(p) > 1 else None
            self.op = '@'; self.kind = 'pseudo'; return
        if t.endswith(':') or t.startswith('.') or not t:
            self.op = t; self.kind = 'label' if t.endswith(':') else 'dir'; return
        p = t.split(None, 1); op = p[0]; self.op = op
        rest = p[1] if len(p) > 1 else ''
        ops = []; cur = ''; d = 0
        for ch in rest:
            if ch == '[': d += 1
            if ch == ']': d -= 1
            if ch == ',' and d == 0: ops.append(cur.strip()); cur = ''
            else: cur += ch
        ops.append(cur.strip())
        mods = ''
        if ops and ' ' in ops[-1]:
            q = ops[-1].split(None, 1); ops[-1] = q[0]; mods = q[1]
        R = [regs_of(o) for o in ops]
        base = op.replace('_e32', '').replace('_e64', '').replace('_dpp', '').replace('_sdwa', '')
        if op.startswith('v_mfma'):
            self.kind = 'mfma'; self.defs = R[0]; self.A, self.B, self.C = R[1], R[2], R[3]
            self.uses = R[1] | R[2] | R[3]
            self.passes = 8 if '32x32x16' in op else 4 if ('16x16x32' in op or '16x16x16' in op) else None
            assert self.passes
        elif op.startswith('v_'):
            self.kind = 'valu'
            self.defs = set(R[0]); self.uses = set().union(*R[1:]) if len(R) > 1 else set()
            if base.startswith('v_permlane') and 'swap' in base:
                self.defs = R[0] | R[1]; self.uses = R[0] | R[1]; self.kind = 'valu'
            if base in ('v_fmac_f32', 'v_mac_f32', 'v_pk_fmac_f16', 'v_writelane_b32', 'v_dot2c_f32_bf16'): self.uses |= R[0]
            if base.startswith('v_cmpx'): self.defs |= EXEC
            if base == 'v_cndmask_b32' and len(ops) == 3: self.uses |= VCC
            if base in ('v_add_co_u32', 'v_sub_co_u32', 'v_addc_co_u32', 'v_div_scale_f32', 'v_mad_u64_u32'):
                self.defs |= R[1]; self.uses = set().union(*R[2:])
            if base == 'v_div_fmas_f32': self.uses |= VCC
            if any(w in mods for w in DPPW) or op.endswith('_dpp'):
                self.dpp = True; self.uses |= R[0]
            if 'dst_sel' in mods or 'op_sel' in mods and base.startswith('v_cvt'): self.uses |= R[0]
        elif op.startswith('ds_'):
            self.kind = 'ds'
            if op.startswith('ds_read') or op.startswith('ds_bpermute') or op.startswith('ds_permute') or op.startswith('ds_swizzle') or '_rtn_' in op:
                self.defs = R[0]; self.uses = set().union(*R[1:])
            else:
                self.uses = set().union(*R)
        elif op.startswith('buffer_') or op.startswith('global_'):
            self.kind = 'vmem'
            allm = ' ' + mods + ' '
            if ' lds ' in allm or '_lds_' in op:
                self.lds = True; self.uses = set().union(*R) | M0
            elif '_load' in op:
                self.defs = R[0]; self.uses = set().union(*R[1:])
            elif '_store' in op:
                self.uses = set().union(*R)
                self.wide = op.endswith('x4') or op.endswith('x3')
                self.C = R[0] if op.startswith('buffer_') else R[1]
            elif '_atomic' in op:
                self.uses = set().union(*R)
                if ' sc0 ' in allm: self.defs = R[0]
            elif op in ('buffer_wbl2', 'buffer_inv'):
                pass
            else: raise ValueError(text)
        elif op.startswith('s_load') or op.startswith('s_buffer_load') or op in ('s_memtime', 's_memrealtime'):
            self.kind = 'smem'; self.defs = R[0]; self.uses = set().union(*R[1:]) if len(R) > 1 else set()
        elif op.startswith('s_'):
            self.kind = 'salu'
            if op in ('s_waitcnt', 's_nop', 's_barrier', 's_endpgm', 's_branch', 's_setprio', 's_sleep') or op.startswith('s_cbranch'):
                self.kind = 'ctl'
            elif op.startswith('s_cmp') or op.startswith('s_bitcmp'):
                self.uses = set().union(*R)
            else:
                self.defs = set(R[0]); self.uses = set().union(*R[1:]) if len(R) > 1 else set()
                if 'saveexec' in op: self.defs |= EXEC; self.uses |= EXEC
                if op in ('s_addk_i32', 's_mulk_i32'): self.uses |= R[0]
        else:
            raise ValueError('unknown op: ' + text)

def states(ins):
    if ins.kind in ('pseudo', 'label', 'dir'): return 0
    if ins.op == 's_nop': return int(ins.text.split()[1], 0) + 1
    return 1

def need_gap(p, c):
    n = 0
    vd = {r for r in p.defs if r[0] in 'va'}
    sd = {r for r in p.defs if r[0] == 's'}
    if p.kind == 'valu':
        if c.kind == 'mfma':
            if vd & c.uses: n = max(n, 2)
            if sd & EXEC: n = max(n, 4)
        if c.kind == 'valu':
            cb = c.op
            if c.dpp and vd & c.uses: n = max(n, 2)
            if c.dpp and sd & EXEC: n = max(n, 5)
            if cb.startswith('v_permlane') and vd & c.uses: n = max(n, 2)
            if cb.startswith('v_permlane') and sd & EXEC: n = max(n, 4)
            if (cb.startswith('v_readlane') or cb.startswith('v_readfirstlane')) and vd & c.uses: n = max(n, 1)
            if (cb.startswith('v_readlane') or cb.startswith('v_readfirstlane') or cb.startswith('v_writelane')) and (sd & EXEC): n = max(n, 4)
            if sd & c.uses:
                n = max(n, 4 if (cb.startswith('v_readlane') or cb.startswith('v_writelane') or cb.startswith('v_div_fmas')) else 2)
            if any(p.op.startswith(t) for t in TRANS) and vd & c.uses: n = max(n, 1)
            if ('op_sel' in p.text or 'dst_sel' in p.text) and not p.op.startswith('v_pk') and vd & (c.uses | c.defs): n = max(n, 1)
        if c.kind in ('vmem',) and sd & c.uses: n = max(n, 5)
        if c.kind in ('salu', 'smem') and sd & c.uses: n = max(n, 1)
        if c.kind == 'ctl' and c.op.startswith('s_cbranch_vcc') and sd & VCC: n = max(n, 1)
    if p.kind == 'salu':
        if c.kind == 'vmem' and c.lds and sd & M0: n = max(n, 1)
    if p.kind == 'vmem' and p.wide:
        if p.C & c.defs: n = max(n, 2 if c.kind in ('valu', 'mfma') else 1)
    if p.kind == 'mfma':
        big = p.passes == 8
        if c.kind == 'mfma':
            if p.defs & (c.A | c.B): n = max(n, 12 if big else 8)
            if p.defs & c.C:
                if not (p.defs == c.C and p.op == c.op): n = max(n, 10 if big else 6)
            elif p.defs & c.defs and not (p.defs == c.defs and p.passes == c.passes):
                n = max(n, 10 if big else 6)
        elif c.kind in ('valu', 'vmem', 'ds'):
            if p.defs & (c.uses | c.defs): n = max(n, 12 if big else 8)
            if c.kind == 'valu' and p.C & c.defs: n = max(n, 7 if big else 3)
            if c.kind in ('vmem', 'ds') and p.C & c.defs: n = max(n, 7 if big else 3)
    return n

class Kernel:
    def __init__(self, name):
        self.name = name; self.ins = []
    _uid = 0
    def uid(self): self._uid += 1; return self._uid
    def e(self, text, tag=None):
        if isinstance(text, (list, tuple)) and not isinstance(text, str):
            for t in text:
                if isinstance(t, tuple): self.ins.append(Ins(t[0], t[1]))
                else: self.ins.append(Ins(t))
            return
        for line in text.split('\n'):
            line = line.strip()
            if line: self.ins.append(Ins(line, tag))
    def insert_waits(self):
        out = []
        vm = []
        lg = []
        saved = {}
        def emit_wait(nv, nl):
            parts = []
            if nv is not None and nv < len(vm):
                assert nv <= 63, 'vmcnt overflow %d' % nv
                parts.append(f'vmcnt({nv})'); del vm[:len(vm) - nv]
            if nl is not None and nl < len(lg):
                if any(x[2] for x in lg): nl = 0
                if nl > 15: nl = 15
                if nl < len(lg):
                    parts.append(f'lgkmcnt({nl})'); del lg[:len(lg) - nl]
            if parts: out.append(Ins('s_waitcnt ' + ' '.join(parts)))
        for I in self.ins:
            if I.kind == 'pseudo':
                if I.pseudo == 'waitvm':
                    if I.arg in (None, 'all'): emit_wait(0, None)
                    else:
                        tags = I.arg.split()
                        idx = [k for k, x in enumerate(vm) if x[1] in tags]
                        if idx: emit_wait(len(vm) - 1 - idx[-1], None)
                elif I.pseudo == 'waitlg':
                    if I.arg in (None, 'all'): emit_wait(None, 0)
                    else:
                        tags = I.arg.split()
                        idx = [k for k, x in enumerate(lg) if x[1] in tags]
                        if idx: emit_wait(None, len(lg) - 1 - idx[-1])
                elif I.pseudo == 'wait2':
                    tv, tl = I.arg.split()
                    iv = [k for k, x in enumerate(vm) if x[1] == tv]; il = [k for k, x in enumerate(lg) if x[1] == tl]
                    emit_wait(len(vm) - 1 - iv[-1] if iv else None, len(lg) - 1 - il[-1] if il else None)
                elif I.pseudo == 'waitall': emit_wait(0, 0)
                elif I.pseudo == 'save': saved[I.arg] = (list(vm), list(lg))
                elif I.pseudo == 'restore':
                    vm[:] = saved[I.arg][0]; lg[:] = saved[I.arg][1]
                elif I.pseudo == 'check':
                    ca = I.arg.split(); sv, sl = saved[ca[0]]
                    if len(ca) > 1:
                        assert not any(y[0] for y in vm[len(vm) - 0:]) ; sv = list(vm)
                    def norm(x): return [(frozenset(y[0]), y[1]) for y in x]
                    nv, nl = norm(vm), norm(lg); rv, rl = norm(sv), norm(sl)
                    assert (nv == rv[len(rv) - len(nv):] if nv else True) and len(nv) <= len(rv), f'vm state mismatch at {I.arg}\n{nv}\n{rv}'
                    assert (nl == rl[len(rl) - len(nl):] if nl else True) and len(nl) <= len(rl), f'lgkm state mismatch at {I.arg}\n{nl}\n{rl}'
                elif I.pseudo == 'clear': vm.clear(); lg.clear()
                elif I.pseudo in ('loophead', 'loopend', 'hzreset', 'alon', 'aloff'): out.append(I)
                else: raise ValueError(I.text)
                continue
            touch = I.uses | I.defs
            nv = nl = None
            if touch:
                for k in range(len(vm) - 1, -1, -1):
                    if vm[k][0] & touch: nv = len(vm) - 1 - k; break
                for k in range(len(lg) - 1, -1, -1):
                    if lg[k][0] & touch: nl = len(lg) - 1 - k; break
            if I.op == 's_waitcnt':
                m = re.search(r'vmcnt\((\d+)\)', I.text)
                if m and int(m.group(1)) < len(vm): del vm[:len(vm) - int(m.group(1))]
                m = re.search(r'lgkmcnt\((\d+)\)', I.text)
                if m and int(m.group(1)) < len(lg):
                    n = int(m.group(1))
                    if not any(x[2] for x in lg) or n == 0: del lg[:len(lg) - n]
            emit_wait(nv, nl)
            if I.kind == 'vmem' and len(vm) >= 63: emit_wait(62, None)
            out.append(I)
            if I.kind == 'vmem': vm.append((set(I.defs), I.tag))
            elif I.kind == 'ds': lg.append((set(I.defs), I.tag, False))
            elif I.kind == 'smem': lg.append((set(I.defs), I.tag, True))
        self.ins = out
    def insert_nops(self):
        out = []; heads = {}
        W = 14
        def gap_for(hist, I):
            need = 0; d = 0
            for P in reversed(hist):
                if P.pseudo == 'hzreset': break
                if d >= W: break
                if P.kind not in ('pseudo', 'label', 'dir'):
                    g = need_gap(P, I)
                    if g - d > need: need = g - d
                d += states(P)
            return need
        self.nnops = 0
        for I in self.ins:
            if I.pseudo == 'loophead': heads[I.arg] = len(out); out.append(I); continue
            if I.pseudo == 'loopend':
                h = heads[I.arg]; hist = list(out); d = 0; k = h
                while d < W and k < len(out):
                    J = out[k]
                    if J.kind not in ('pseudo', 'label', 'dir'):
                        g = gap_for(hist, J)
                        assert g <= 0, f'back-edge hazard before {J.text} needs {g}'
                    hist.append(J); d += states(J); k += 1
                out.append(I); continue
            if I.kind not in ('pseudo', 'label', 'dir'):
                g = gap_for(out, I)
                if g > 0:
                    out.append(Ins(f's_nop {g-1}')); self.nnops += 1
            out.append(I)
        self.ins = out
    align = None
    WIDEN = ('v_exp_f32', 'v_rcp_f32', 'v_rsq_f32', 'v_sqrt_f32', 'v_mov_b32', 'v_add_f32', 'v_mul_f32', 'v_sub_f32', 'v_max_f32', 'v_and_b32',
             'v_lshlrev_b32', 'v_lshrrev_b32', 'v_add_u32', 'v_xor_b32', 'v_or_b32', 'v_permlane32_swap_b32', 'v_permlane16_swap_b32', 'v_min_u32', 'v_mul_u32_u24', 'v_subrev_u32', 'v_sub_u32')
    def sizes(self):
        import subprocess, tempfile, os
        real = [I for I in self.ins if I.kind not in ('pseudo', 'dir')]
        src = '.amdgcn_target "amdgcn-amd-amdhsa--gfx950"\n.text\n' + '\n'.join(I.text for I in real) + '\n'
        with tempfile.TemporaryDirectory() as d:
            open(d + '/a.s', 'w').write(src)
            subprocess.check_call(['clang', '-target', 'amdgcn-amd-amdhsa', '-mcpu=gfx950', '-c', d + '/a.s', '-o', d + '/a.o'])
            o = subprocess.check_output(['llvm-objdump', '-d', d + '/a.o']).decode()
        sz = [4 * len(m.group(1).split()) for m in re.finditer(r'// [0-9A-F]+: ((?:[0-9A-F]{8} ?)+)', o)]
        ins = [I for I in real if I.kind != 'label']
        assert len(sz) == len(ins), (len(sz), len(ins))
        return {id(I): n for I, n in zip(ins, sz)}
    def align8(self, mode):
        sz = self.sizes(); out = []; ph = 0; run = []
        self.npad = self.nwide = 0
        on = not any(I.pseudo == 'alon' for I in self.ins)
        for I in self.ins:
            if I.pseudo in ('alon', 'aloff'): on = I.pseudo == 'alon'
            if I.kind == 'dir' and I.text.startswith('.p2align'): ph = 0; run = []
            if I.kind in ('pseudo', 'dir', 'label'): out.append(I); continue
            n = sz[id(I)]
            if n == 4: run.append(len(out)); out.append(I); ph ^= 4; continue
            if ph and on:
                w = [k for k in run if out[k].op in self.WIDEN]
                sp = [k for k in run if out[k].op == 's_waitcnt' and 'vmcnt' in out[k].text and 'lgkmcnt' in out[k].text]
                if w:
                    J = out[w[0]]; J.text = J.text.replace(J.op, J.op + '_e64', 1); ph = 0; self.nwide += 1
                elif mode == 'all':
                    if sp:
                        a_, b_ = out[sp[0]].text.split()[1:3]
                        out[sp[0]] = Ins('s_waitcnt ' + a_); out.insert(sp[0] + 1, Ins('s_waitcnt ' + b_))
                    else: out.append(Ins('s_nop 0'))
                    ph = 0; self.npad += 1
            out.append(I); run = []
        self.ins = out
    stsuffix = ''
    def text(self):
        if self.stsuffix:
            for I in self.ins:
                if I.op.startswith('buffer_store') and 's[60:63]' not in I.text: I.text += self.stsuffix
        self.insert_waits(); self.insert_nops()
        if self.align: self.align8(self.align)
        L = []
        for I in self.ins:
            if I.kind == 'pseudo': continue
            L.append(I.text if I.kind in ('label', 'dir') else ' ' + I.text)
        return '\n'.join(L)
    def maxregs(self):
        mv = ma = -1
        for I in self.ins:
            for c, i in I.defs | I.uses:
                if c == 'v': mv = max(mv, i)
                if c == 'a': ma = max(ma, i)
        return mv + 1, ma + 1

def interleave(main, fill, start=0, per=1, every=1):
    fill = list(fill); k = start
    while fill:
        if k >= len(main): main[-1].extend(fill); break
        for _ in range(per):
            if fill:
                x = fill.pop(0)
                if isinstance(x, list): main[k].extend(x)
                else: main[k].append(x)
        k += every
    return main

def flatten(slots):
    o = []
    for sl in slots: o.extend(sl)
    return o

def wrap_file(header, kernels, launches):
    L = [header.rstrip('\n')]
    for (n, g, b, l) in launches:
        L.append(f'; @launch kernel={n} grid=({g},1,1) block=({b},1,1) lds={l}')
    L.append('.amdgcn_target "amdgcn-amd-amdhsa--gfx950"')
    L.append('.text')
    desc = []
    for K in kernels:
        t = K.text()
        nv, na = K.maxregs()
        acc = max(4, (nv + 3) // 4 * 4)
        tot = acc + na if na else max(nv, 1)
        L += [f'.globl {K.name}', '.p2align 8', f'.type {K.name},@function', f'{K.name}:', t]
        desc += ['.p2align 6', f'.amdhsa_kernel {K.name}', f'  .amdhsa_next_free_vgpr {tot}', '  .amdhsa_next_free_sgpr 102',
                 f'  .amdhsa_accum_offset {acc}', '  .amdhsa_group_segment_fixed_size 0', '  .amdhsa_kernarg_size 112',
                 '  .amdhsa_user_sgpr_count 2', '  .amdhsa_user_sgpr_kernarg_segment_ptr 1', '  .amdhsa_system_sgpr_workgroup_id_x 1',
                 '.end_amdhsa_kernel']
    L.append('.section .rodata,"a"')
    L += desc
    return '\n'.join(L) + '\n'
```

```python
from asmlib import *
import os
NAME = 'adaLN_cond__grouped_kv_mqa__glu_gated_glu__prompt'
KA = dict(x=0, wq=8, wk=16, wv=24, wo=32, wg=48, wu=56, wd=64, c=72, wmod=80, out=88, dbg=96, ws=104)
WS_MOD   = 0x0
WS_MODB  = 0x8000
WS_UTF   = 0x100000
WS_STATS = 0x200000
WS_KV    = 0x300000
WS_H1    = 0x400000
WS_O     = 0x800000
WS_X1    = 0xC00000
WS_X1S   = 0x1000000
WS_HH    = 0x1400000
LOG2E = 1.4426950408889634
import struct
def f2h(x): return '0x%08x' % struct.unpack('<I', struct.pack('<f', x))[0]

def srd(K, d, base, off, size):
    if off:
        K.e(f's_add_u32 s{d}, s{base}, {hex(off)}')
        K.e(f's_addc_u32 s{d+1}, s{base+1}, 0')
    else:
        K.e(f's_mov_b32 s{d}, s{base}')
        K.e(f's_mov_b32 s{d+1}, s{base+1}')
    K.e(f's_mov_b32 s{d+2}, {hex(size)}')
    K.e(f's_mov_b32 s{d+3}, 0x00020000')

def guard(K, nwg):
    K.e(f's_cmp_ge_u32 s2, {nwg}')
    K.e(f's_cbranch_scc1 {K.name}_end')

def finish(K):
    K.e(f'{K.name}_end:')
    K.e('s_endpgm')

HEADER = open('cdna_kernels/' + NAME + '.s.ref').read().split('; Override launch')[0]

WS_STAMP = 0x8000000
def stamp(K, i):
    K.e(f's_memtime s[{64+4*i}:{65+4*i}]')
    K.e(f's_memrealtime s[{66+4*i}:{67+4*i}]')
def dump_stamps(K, n, wsbase, kidx=0):
    K.e('@waitall')
    srd(K, 60, wsbase, WS_STAMP + kidx * 0x10000, 0x10000)
    K.e('s_lshl_b32 s59, s2, 2\ns_add_u32 s59, s59, s3\ns_lshl_b32 s59, s59, 6')
    K.e('v_mov_b32 v1, 0')
    for i in range(n):
        K.e(f'v_mov_b32 v2, s{64+4*i}\nv_mov_b32 v3, s{66+4*i}')
        K.e(f'buffer_store_dwordx2 v[2:3], v1, s[60:63], s59 offen offset:{8*i}')
        K.e('s_waitcnt vmcnt(0)')

def perm_table(K, vT, NST, mode, t0, t1, wstep=262144, bstep=4096, vl=0, sj=11, sa=18, sb=19, emit=True):
    L = [f's_lshr_b32 s{sa}, s{sj}, 2', f's_and_b32 s{sb}, s{sj}, 3']
    if mode == 'lead':
        L += [f's_add_u32 s{sa}, s{sa}, s{sb}', f's_and_b32 s{sa}, s{sa}, 3',
              f'v_subrev_u32 v{t0}, s{sa}, v{vl}', f'v_and_b32 v{t0}, 3, v{t0}',
              f'v_sub_u32 v{t1}, v{vl}, v{t0}',
              f'v_cmp_eq_u32 vcc, 0, v{t0}', f'v_cndmask_b32 v{t0}, -1, 3, vcc',
              f'v_cmp_gt_u32 vcc, {NST - 3}, v{t1}', f'v_cndmask_b32 v{t0}, 0, v{t0}, vcc', f'v_add_u32 v{t0}, v{vl}, v{t0}']
    elif mode == 'rot':
        L += [f's_lshl_b32 s{sb}, s{sb}, 1', f's_add_u32 s{sa}, s{sa}, s{sb}', f'v_add_u32 v{t0}, s{sa}, v{vl}', f'v_and_b32 v{t0}, {NST - 1}, v{t0}']
    elif mode == 'rotb':
        L += [f'v_add_u32 v{t0}, s{sa}, v{vl}', f'v_and_b32 v{t0}, {NST - 1}, v{t0}']
    else: L += [f'v_mov_b32 v{t0}, v{vl}']
    L += [f'v_mul_u32_u24 v{vT}, {wstep}, v{t0}', f'v_mul_u32_u24 v{vT+1}, {bstep}, v{t0}']
    if emit: K.e(L)
    return L

WS_FLAG = 0x20000
FSH = int(os.environ.get('FSH', 7)); FS = 1 << FSH
F_O = 0
F_X = 512 * FS
F_H = 1024 * FS
F_U = 1280 * FS
F_SIZE = 1536 * FS
class Stamps:
    def __init__(self, K, on, kidx): self.K = K; self.on = on; self.kidx = kidx; self.n = 0; self.names = []
    def __call__(self, name=''):
        if not self.on: return
        if self.on == 'cnt' and name in ('qproj', 'e5', 'k6'): return
        self.K.e(f'{"s_memtime" if self.on == "cyc" else "s_memrealtime"} s[{66+2*self.n}:{67+2*self.n}]'); self.K.ins[-1].kind = 'salu'; self.n += 1
        self.names.append(name)
        assert self.n <= 14
    def dump(self, wsbase):
        if not self.on: return
        K = self.K
        K.e('s_waitcnt vmcnt(0) lgkmcnt(0)')
        srd(K, 60, wsbase, WS_STAMP + self.kidx * 0x10000, 0x10000)
        K.e('s_lshl_b32 s59, s2, 2\ns_add_u32 s59, s59, s3\ns_lshl_b32 s59, s59, 6\nv_mov_b32 v1, 0')
        for i in range(self.n):
            K.e(f'v_mov_b32 v2, s{66+2*i}\nbuffer_store_dword v2, v1, s[60:63], s59 offen offset:{4*i}\ns_waitcnt vmcnt(0)')
        K.e(f'v_mov_b32 v2, 0x4d454741\nbuffer_store_dword v2, v1, s[60:63], s59 offen offset:60\ns_waitcnt vmcnt(0)')
        K.e('; STAMPS ' + ' '.join(self.names))
def publish(K, sF, va, vt, nl=1):
    l = f'{K.name}_pub{K.uid()}'
    K.e(f's_cmp_lg_u32 s3, 0\ns_cbranch_scc1 {l}')
    K.e(f'v_mov_b32 v{vt}, 1\ns_mov_b64 exec, {(1 << nl) - 1}\nbuffer_store_dword v{vt}, v{va}, {s(sF,4)}, 0 offen sc1\ns_mov_b64 exec, -1')
    K.ins[-2].kind = 'other'
    K.e(f'{l}:')
def poll(K, sF, va, vt, scnt, sleep=0, one=0, ST=None):
    l = f'{K.name}_poll{K.uid()}'
    K.e(f's_mov_b32 s{scnt}, 0x8000')
    if one: K.e(f's_cmp_lg_u32 s3, {one - 1}\ns_cbranch_scc1 {l}x')
    K.e(f'{l}:')
    K.e(f'buffer_load_dword v{vt}, v{va}, {s(sF,4)}, 0 offen sc1\ns_sub_u32 s{scnt}, s{scnt}, 1')
    if sleep: K.e(f's_sleep {sleep}')
    K.e('s_waitcnt vmcnt(0)')
    K.e(f'v_cmp_ne_u32 vcc, 1, v{vt}\ns_cselect_b64 vcc, 0, vcc\ns_cbranch_vccnz {l}')
    if one: K.e(f'{l}x:\ns_barrier')
    if ST and ST.on == 'cnt': K.e(f's_sub_u32 s{66+2*ST.n}, 0x8000, s{scnt}'); ST.n += 1; ST.names.append('#')
```

```python
from common import *
MF = 'v_mfma_f32_16x16x32_bf16'
class GW:
    nodma = nob = VP = None
    def __init__(self, K, NM, nsteps, kmap, regs, NS, R, lds0=0, srdW=20, srdB=24, sW=40, sB=41, sM=17, kbtot=None,
                 resident=False, bflag='', tag='W', slots=None):
        self.__dict__.update(K=K, NM=NM, n=nsteps, kmap=kmap, NS=NS, R=R, lds0=lds0, srdW=srdW, srdB=srdB, sW=sW, sB=sB, sM=sM,
                             kbtot=kbtot or nsteps, resident=resident, bflag=bflag, tag=tag)
        self.RB = 32 * NM
        self.SR = 16384 // self.RB
        self.SPS = self.SR // 32
        self.NST = nsteps // self.SPS
        self.ACC, self.VD, self.VB, self.VT, self.AA, self.AB = (regs[k] for k in ('acc', 'vd', 'vb', 'vt', 'aa', 'ab'))
        self.NG = (lds0 % 65536 + NS * 16384 + 65535) // 65536
        self.slots = slots or [16384 * i for i in range(NS)]
        if slots: self.NG = (max(slots) + 16384 + 65535) // 65536
        if resident: assert NS >= self.NST
    def acc(self, mt, nt): return self.ACC + 4 * (2 * mt + nt)
    def setup_w(self, vlane, swave, sn0, t0, t1, srow0=None):
        K = self.K; VD = self.VD; RI = 1024 // self.RB
        sh = {8: 3, 4: 4}[RI]
        K.e(f's_lshl_b32 s18, s{swave}, {11 + (4 * RI).bit_length() - 1}\ns_add_u32 s18, s18, s{sn0}')
        for i in range(4):
            if self.NM == 4:
                if self.kmap == 'nat':
                    K.e(f'v_bfe_u32 v{t0}, v{vlane}, 4, 1')
                    if i & 1: K.e(f'v_or_b32 v{t0}, 2, v{t0}')
                else: K.e(f'v_bfe_u32 v{t0}, v{vlane}, 4, 2')
            else:
                assert self.kmap == 'p16'
                K.e(f'v_lshrrev_b32 v{t0}, 4, v{vlane}')
                if i & 1: K.e(f'v_or_b32 v{t0}, 4, v{t0}')
            K.e(f'v_lshlrev_b32 v{t0}, 1, v{t0}\nv_xor_b32 v{t0}, v{t0}, v{vlane}\nv_and_b32 v{t0}, {2*self.NM-1}, v{t0}\nv_lshlrev_b32 v{t0}, 4, v{t0}')
            K.e(f'v_lshrrev_b32 v{t1}, {sh}, v{vlane}\nv_lshl_add_u32 v{t0}, v{t1}, 11, v{t0}')
            K.e(f'v_add_u32 v{t0}, s18, v{t0}')
            K.e(f'v_add_u32 v{VD+i}, {i * (RI * 2048 - 1024)}, v{t0}')
        K.e(f's_lshl_b32 s{self.sM}, s{swave}, 12')
        if self.lds0: K.e(f's_add_u32 s{self.sM}, s{self.sM}, {self.lds0}')
        K.e(f's_mov_b32 m0, s{self.sM}\ns_mov_b32 s{self.sW}, ' + (f's{srow0}' if srow0 is not None else '0'))
        if self.VP is not None: K.e(f'v_readlane_b32 s{self.sW}, v{self.VP}, 0')
        self.QW = [(st, g) for st in range(self.NST) for g in self.dma(st)]
    def setup_b(self, vlane, stt0, t0, t1, skb0=None, sflip=None):
        K = self.K; VB, VT = self.VB, self.VT
        K.e(f's_mul_i32 s18, s{stt0}, {self.kbtot * 1024}')
        K.e(f'v_lshl_add_u32 v{VB}, v{vlane}, 4, s18\nv_add_u32 v{VB+1}, {self.kbtot * 1024}, v{VB}')
        K.e(f's_mov_b32 s{self.sB}, ' + (f's{skb0}' if skb0 is not None else '0'))
        if self.kmap == 'nat':    K.e(f'v_lshrrev_b32 v{t0}, 4, v{vlane}\nv_lshlrev_b32 v{t0}, 3, v{t0}')
        elif self.kmap == 'p16':  K.e(f'v_lshrrev_b32 v{t0}, 4, v{vlane}\nv_lshlrev_b32 v{t0}, 2, v{t0}')
        else:                     K.e(f'v_lshrrev_b32 v{t0}, 5, v{vlane}\nv_lshlrev_b32 v{t0}, 4, v{t0}\nv_bfe_u32 v{t1}, v{vlane}, 4, 1\nv_lshl_add_u32 v{t0}, v{t1}, 2, v{t0}')
        K.e(f'v_bfe_u32 v{t1}, v{vlane}, 2, 2\nv_add_u32 v{t0}, v{t0}, v{t1}\nv_lshlrev_b32 v{t0}, {self.RB.bit_length() - 1}, v{t0}')
        K.e(f'v_and_b32 v{t1}, 3, v{vlane}\nv_lshl_add_u32 v{t0}, v{t1}, 3, v{t0}')
        if self.lds0 >= 65536: K.e(f'v_add_u32 v{t0}, {self.lds0 // 65536 * 65536}, v{t0}')
        K.e(f'v_bfe_u32 v{t1}, v{vlane}, 3, 2' if self.NM == 4 else f'v_bfe_u32 v{t1}, v{vlane}, 2, 3')
        if sflip is not None: K.e(f'v_xor_b32 v{t1}, s{sflip}, v{t1}')
        for mt in range(self.NM):
            K.e(f'v_xor_b32 v{VT+mt}, {mt}, v{t1}\nv_lshl_add_u32 v{VT+mt}, v{VT+mt}, 5, v{t0}')
            for g in range(1, self.NG): K.e(f'v_add_u32 v{VT+self.NM*g+mt}, {65536*g}, v{VT+mt}')
        if self.VP is not None: K.e(f'v_readlane_b32 s{self.sB}, v{self.VP+1}, 0')
        self.QB = [(t, g) for t in range(self.n) for g in self.bload(t)]
    def dma(self, st):
        L = []
        for i in range(4):
            off = f' offset:{1024*i}' if i else ''
            g = [(f'buffer_load_dwordx4 v{self.VD+i}, {s(self.srdW,4)}, s{self.sW} offen{off} lds', f'{self.tag}{st}')]
            if self.nodma and st >= self.NS: g = ['s_nop 0']
            if i == 3 and st + 1 < self.NST: g += [f's_add_u32 m0, s{self.sM}, {self.slots[(st+1) % self.NS]}', f's_add_u32 s{self.sW}, s{self.sW}, {self.SR*2048}' if self.VP is None else f'v_readlane_b32 s{self.sW}, v{self.VP}, {st+1}']
            L.append(g)
        return L
    def bload(self, t):
        L = []
        for nt in range(2):
            off = f' offset:{1024*(t%4)}' if t % 4 else ''
            g = [(f'buffer_load_dwordx4 {a(self.AB + 8*(t%self.R) + 4*nt, 4)}, v{self.VB+nt}, {s(self.srdB,4)}, s{self.sB} offen{off}{self.bflag}', f'{self.tag}B{t}')]
            if self.nob and t >= self.R: g = ['s_nop 0']
            if nt == 1 and t % 4 == 3 and t + 1 < self.n: g.append(f's_add_u32 s{self.sB}, s{self.sB}, 4096' if self.VP is None else f'v_readlane_b32 s{self.sB}, v{self.VP+1}, {(t+1)//4}')
            L.append(g)
        return L
    def areads(self, t):
        st, ks = divmod(t, self.SPS); slot = st % self.NS
        ttoff = {'nat': 4, 'p16': 16, 'om': 8}[self.kmap] * self.RB
        L = []
        for mt in range(self.NM):
            for tt in range(2):
                g, off = divmod(self.lds0 % 65536 + self.slots[slot] + ks * 32 * self.RB + tt * ttoff, 65536)
                L.append((f'ds_read_b64_tr_b16 {a(self.AA + 4*self.NM*(t%3) + 4*mt + 2*tt, 2)}, v{self.VT + self.NM*g + mt} offset:{off}', f'A{t}'))
        return L
    def issue_w(self, nst):
        while self.QW and self.QW[0][0] < nst: self.K.e(self.QW.pop(0)[1])
    def issue_b(self, nsteps):
        while self.QB and self.QB[0][0] < nsteps: self.K.e(self.QB.pop(0)[1])
    def issue_mixed(self, nst):
        for st in range(nst):
            self.issue_w(st + 1); self.issue_b(min((st + 1) * self.SPS, self.R))
    def main(self, side=None, first_c='0', bper=3, wper=None, extra=None, start_barrier=True):
        K = self.K; T = self.n; S = self.SPS; side = side or {}; NG2 = 2 * self.NM
        wper = wper or 4 // S + 1
        extra = list(extra or [])
        if start_barrier: K.e(f'@waitvm {self.tag}{self.NST - 1 if self.resident else (1 // S)}\ns_barrier')
        K.e(self.areads(0) + self.areads(1))
        K.e(f'@waitvm {self.tag}B0\n@waitlg A0')
        for t in range(T):
            slots = []
            for mt in range(self.NM):
                for k in range(2):
                    nt = k if mt % 2 == 0 else 1 - k
                    d = v(self.acc(mt, nt), 4); c = first_c if t == 0 else d
                    slots.append([f'{MF} {d}, {a(self.AA + 4*self.NM*(t%3) + 4*mt, 4)}, {a(self.AB + 8*(t%self.R) + 4*nt, 4)}, {c}'])
            newst = (t + 2) % S == 0 and t + 2 < T and not self.resident and (t + 2) // S > 1 // S
            rd = self.areads(t + 2) if t + 2 < T else []
            if newst:
                slots[0].append(f'@waitvm {self.tag}{(t+2)//S}'); slots[1].append('s_barrier')
                interleave(slots, rd[:-2], 2, 1, 1); interleave(slots, rd[-2:], NG2 - 3, 1, 2)
            else: interleave(slots, rd, 0, 1, 1)
            if t + 1 < T: slots[self.NM - 1] += [f'@wait2 {self.tag}B{t+1} A{t+1}']
            vm = []
            while self.QW and len(vm) < wper and (self.QW[0][0] < self.NS or S * (self.QW[0][0] - self.NS + 2) - 2 + (0 if S == 1 else 0) <= t - (0 if newst or S * (self.QW[0][0] - self.NS + 2) - 2 < t else 1)):
                vm.append(self.QW.pop(0)[1])
            nb = 0
            while self.QB and nb < bper and self.QB[0][0] - self.R + 1 <= t: vm.append(self.QB.pop(0)[1]); nb += 1
            if not self.QW and not self.QB:
                while extra and len(vm) < 3: vm.append(extra.pop(0))
            if vm:
                gaps = [g for g in range(2, NG2) if g != self.NM - 1]
                stp = max(1, len(gaps) // len(vm))
                for k, g in enumerate(vm): slots[gaps[min(k * stp, len(gaps) - 1)]] += g
            if t in side: interleave(slots, side[t], 0, 1, 1)
            K.e(flatten(slots))
        assert not self.QW and not self.QB and not extra
```

```python
from k3 import *
STG = 28672; UPO = 14336
SLOT5 = [131072, 0, STG, 2 * STG, 3 * STG]
FLAG = 131072 + STG
VD5 = 224
VDO = 244
S5W = 60
S5T = 94; S5N = 95; S5M = 96
AX1 = 236

def k5_ids(K):
    K.e(f's_and_b32 s16, s10, 1\ns_lshl_b32 s16, s16, 2\ns_and_b32 s19, s11, 3\ns_add_u32 s16, s16, s19')
    K.e(f's_lshl_b32 s16, s16, 4\ns_lshl_b32 s19, s3, 2\ns_add_u32 s{S5T}, s16, s19')
    K.e(f's_lshr_b32 s16, s10, 1\ns_lshl_b32 s16, s16, 3\ns_lshr_b32 s19, s11, 2\ns_add_u32 s{S5N}, s16, s19')
    K.e(f's_mul_i32 s{S5M}, s3, 7168')
    K.e(f's_cmp_ge_u32 s3, 2\ns_cselect_b32 s{S5W}, s46, s44\ns_cselect_b32 s{S5W+1}, s47, s45')
    K.e(f's_mov_b32 s{S5W+2}, {1024*7168}\ns_mov_b32 s{S5W+3}, 0x00020000')
    K.e(f's_and_b32 s16, s3, 1\ns_mul_i32 s16, s16, {32*7168}\ns_mul_i32 s19, s{S5N}, 224\ns_add_u32 s16, s16, s19')
    K.e(f's_mov_b32 s19, 0x124a\ns_and_b32 s18, s{S5N}, 1\ns_lshl_b32 s18, s18, 1')
    for i in range(7):
        K.e(f'v_add_u32 v1, {64*i}, v0')
        K.e('v_mul_lo_u32 v2, v1, s19\nv_lshrrev_b32 v2, 16, v2')
        K.e('v_mul_u32_u24 v3, 14, v2\nv_sub_u32 v1, v1, v3\nv_add_u32 v1, s18, v1')
        K.e('v_subrev_u32 v3, 14, v1\nv_min_u32 v1, v1, v3')
        K.e('v_mul_u32_u24 v2, 7168, v2\nv_lshl_add_u32 v1, v1, 4, v2')
        K.e(f'v_add_u32 v{VD5+i}, s16, v1')
        if i % 4: K.e(f'v_subrev_u32 v{VD5+i}, {1024*(i%4)}, v{VD5+i}')
def dma5(st, ssw, first=False):
    L = []; slot = SLOT5[st % 5]
    for i in range(7):
        off = f' offset:{1024*(i%4)}' if i % 4 else ''
        g = [(f'buffer_load_dwordx4 v{VD5+i}, {s(S5W,4)}, s{ssw} offen{off} lds', f'G{st}')]
        if i == 0 and first: g = [f's_add_u32 m0, s{S5M}, {slot}', f's_mov_b32 s{ssw}, {st*64*7168}'] + g
        if i == 3: g.append(f's_add_u32 m0, s{S5M}, {slot + 4096}')
        if i == 6: g += [f's_add_u32 s{ssw}, s{ssw}, {64*7168}', f's_add_u32 m0, s{S5M}, {SLOT5[(st+1) % 5]}']
        L.append(g)
    return L

def build_mega(name='m_kernel', opt=None):
    opt = opt or {}
    upto = opt.get('upto', 6)
    K = Kernel(name); ST = Stamps(K, opt.get('stamp'), opt.get('kidx', 0))
    guard(K, 256)
    ST('start')
    K.e(f's_load_dwordx2 s[4:5], s[0:1], {KA["wq"]}')
    K.e(f's_load_dwordx2 s[8:9], s[0:1], {KA["ws"]}')
    K.e(f's_load_dwordx2 s[98:99], s[0:1], {KA["wo"]}')
    K.e(f's_load_dwordx2 s[100:101], s[0:1], {KA["wd"]}')
    K.e(f's_load_dwordx4 s[44:47], s[0:1], {KA["wg"]}')
    K.e(f's_load_dwordx2 s[64:65], s[0:1], {KA["x"]}')
    tile_ids(K)
    VP = 240
    G = G64(K, 32, 'nat', dict(acc=4, vd=36, vb=40, vt=42, aa=0, ab=32), NS=4, R=16)
    G.VP = VP; perm_table(K, VP, 8, 'lead', 1, 2)
    G.setup(0, 3, 14, 15, 1, 2)
    srd(K, 20, 4, 0, 1024 * 2048)
    srd(K, 24, 8, WS_H1, 0x400000)
    G.prologue(opt.get('pro', 2))
    G4 = GW(K, 4, 32, 'om', dict(acc=4, vd=VDO, vb=40, vt=42, aa=0, ab=48), 8, opt.get('R4', 16), resident=True, bflag=' sc1', srdW=52, tag='O')
    VP4 = VP
    if opt.get('perm4', 'lead') != 'lead': VP4 = 242; perm_table(K, VP4, 8, opt['perm4'], 1, 2)
    G4.VP = VP4
    K.e('s_lshl_b32 s18, s3, 16\ns_add_u32 s18, s18, s14')
    K.e('v_bfe_u32 v1, v0, 4, 2\nv_lshlrev_b32 v1, 1, v1\nv_xor_b32 v1, v1, v0\nv_and_b32 v1, 7, v1\nv_lshlrev_b32 v1, 4, v1')
    K.e(f'v_lshrrev_b32 v2, 3, v0\nv_lshl_add_u32 v1, v2, 11, v1\nv_add_u32 v{VDO}, s18, v1')
    for i in range(1, 4): K.e(f'v_add_u32 v{VDO+i}, {i * (8 * 2048 - 1024)}, v{VDO}')
    G4.QW = []
    if upto >= 5: k5_ids(K)
    S = [48, 64]; NM = [80, 96]; P = [112, 120]; L = [128, 132]; O = [136, 152]; Q = [168, 176]; SEL = 184
    F = [188, 204]; VRD = 220; VL = 221; VS0 = 222; VB2 = 231; VJ = 232; VO = 233; VU = 234; VM = 236; VJK = 237
    VFA = 248; VFP = 249; VFT = 250
    RING = 65536
    fr = v
    srd(K, 28, 8, WS_KV, 0x40000)
    srd(K, 52, 98, 0, 1024 * 2048)
    K.e(f'v_lshlrev_b32 v{VL}, 4, v0\nv_add_u32 v{VB2}, {RING}, v{VL}')
    K.e(f's_lshl_b32 s56, s3, 12\ns_add_u32 s6, s56, 2048\ns_add_u32 s56, s56, {RING}')
    K.e(f's_lshl_b32 s7, s2, 2\ns_add_u32 s7, s7, s3\ns_lshl_b32 s7, s7, 11\nv_lshlrev_b32 v{VJ}, 5, v0')
    K.e(f's_lshl_b32 s16, s12, {5+FSH}\ns_lshl_b32 s19, s13, {FSH}\ns_add_u32 s19, s19, s16\ns_lshl_b32 s18, s2, {FSH}\ns_add_u32 s18, s18, {F_U}')
    K.e(f'v_mov_b32 v{VFA}, s19\nv_writelane_b32 v{VFA}, s18, 1\nv_and_b32 v1, 15, v0\nv_lshl_add_u32 v{VFP}, v1, {FSH}, s16')
    K.e('s_and_b32 s10, s2, 3\ns_lshr_b32 s11, s2, 2\ns_cmp_ge_u32 s11, 28\ns_cselect_b32 s32, s46, s44\ns_cselect_b32 s33, s47, s45')
    K.e('s_cselect_b32 s16, 28, 0\ns_cselect_b32 s97, 8, 0\ns_sub_u32 s11, s11, s16')
    K.e(f's_cmp_ge_u32 s2, 224\ns_cselect_b32 s34, 0, {1024*7168}\ns_mov_b32 s35, 0x00020000')
    K.e('v_lshrrev_b32 v1, 4, v0\nv_mul_u32_u24 v2, 7168, v1\nv_lshlrev_b32 v1, 1, v1\nv_xor_b32 v1, v1, v0\nv_and_b32 v1, 15, v1')
    K.e(f'v_lshl_add_u32 v{VS0}, v1, 4, v2\nv_xor_b32 v1, 8, v1\nv_lshl_add_u32 v1, v1, 4, v2\nv_add_u32 v{VS0+1}, {4*7168-1024}, v1')
    def ring_pro():
        Lq = [[f'buffer_load_dwordx4 {fr(F[1]+8+4*b,4)}, v{VL}, s[28:31], 0 offen offset:{1024*b}'] for b in range(2)]
        for st in range(4):
            for i in range(4):
                g = []
                if i == 0: g = [f's_add_u32 m0, s56, {16384*st}', ('s_mov_b32 s42, s6' if st == 0 else 's_add_u32 s42, s42, 16384')]
                Lq.append(g + [(f'buffer_load_dwordx4 v{VL}, s[28:31], s42 offen offset:{1024*i} lds', f'R{st}')])
        return Lq
    for g in ring_pro(): G.Q.append((99, 0, g))
    K.e(f'v_lshrrev_b32 v1, 2, v0\nv_xor_b32 v1, v1, v0\nv_bfe_u32 v1, v1, 2, 1\nv_add_u32 v1, -1, v1\nv_and_b32 v{SEL}, 0x3f803f80, v1')
    for i in range(1, 4): K.e(f'v_mov_b32 v{SEL+i}, v{SEL}')
    srd(K, 36, 8, WS_O, 0x400000)
    srd(K, 44, 8, WS_MODB, 6144 * 2)
    srd(K, 48, 8, WS_UTF, 224 * 1024)
    K.e(f'v_bfe_u32 v1, v0, 4, 1\nv_lshlrev_b32 v1, 15, v1\nv_and_b32 v2, 15, v0\nv_lshl_add_u32 v1, v2, 4, v1\nv_lshrrev_b32 v2, 5, v0\nv_lshl_add_u32 v{VO}, v2, 8, v1')
    K.e('v_lshrrev_b32 v1, 2, v0\nv_and_b32 v2, 7, v1\ns_lshl_b32 s16, s3, 1\nv_xor_b32 v2, s16, v2\nv_lshlrev_b32 v1, 8, v1\nv_lshl_add_u32 v1, v2, 5, v1')
    K.e(f'v_and_b32 v2, 3, v0\nv_lshl_add_u32 v{VU}, v2, 3, v1\nv_xor_b32 v{VU+1}, 32, v{VU}')
    K.e(f'v_and_b32 v1, 1, v0\nv_lshlrev_b32 v1, 11, v1\nv_sub_u32 v1, 8192, v1\nv_lshrrev_b32 v2, 4, v0\nv_lshl_add_u32 v1, v2, 3, v1\ns_lshl_b32 s16, s10, 9\nv_add_u32 v{VM}, s16, v1')
    K.e(f's_mov_b32 s4, {f2h(LOG2E * 32 ** -0.5)}\ns_mov_b32 s5, s4\ns_mov_b32 s12, 0')
    G.main({}, maxper=opt.get('maxper', 5))
    ST('qproj')
    for mt in range(4):
        q = Q[mt >> 1] + 4 * (mt & 1)
        for nt in range(2):
            A0 = G.acc(mt, nt)
            for j in (0, 2): K.e(f'v_pk_mul_f32 {v(A0+j,2)}, {v(A0+j,2)}, s[4:5]')
            K.e(f'v_cvt_pk_bf16_f32 v{q+2*nt}, v{A0}, v{A0+1}\nv_cvt_pk_bf16_f32 v{q+2*nt+1}, v{A0+2}, v{A0+3}')
        K.e(f'v_permlane16_swap_b32 v{q}, v{q+2}\nv_permlane16_swap_b32 v{q+1}, v{q+3}')
    def qk(h, fb, c): return [f'{M32} {v(S[h],16)}, {fr(fb+8,4)}, {v(Q[h],4)}, {c}', f'{M32} {v(S[h],16)}, {fr(fb+12,4)}, {v(Q[h]+4,4)}, {v(S[h],16)}']
    def pv(h, fb): return [f'{M32} {v(O[h],16)}, {fr(fb+4*b,4)}, {v(P[h]+4*b,4)}, {v(O[h],16)}' for b in range(2)]
    def ls(h): return [f'{MF} {v(L[h],4)}, {v(SEL,4)}, {v(P[h]+4*b,4)}, {v(L[h],4)}' for b in range(2)]
    def ex(h):
        va = []; s0 = S[h]
        for i in range(0, 16, 2):
            va += [f'v_exp_f32 v{s0+i}, v{s0+i}', f'v_exp_f32 v{s0+i+1}, v{s0+i+1}']
            if i >= 2: va.append(f'v_cvt_pk_bf16_f32 v{P[h]+i//2-1}, v{s0+i-2}, v{s0+i-1}')
        va.append(f'v_cvt_pk_bf16_f32 v{P[h]+7}, v{s0+14}, v{s0+15}')
        return va
    def rowmax(h, d, init):
        s0 = S[h]
        r = [f'v_max3_f32 v{d}, v{s0}, v{s0+1}, ' + (f'v{s0+2}' if init else f'v{d}')]
        k = 3 if init else 2
        while k < 15: r.append(f'v_max3_f32 v{d}, v{s0+k}, v{s0+k+1}, v{d}'); k += 2
        if k == 15: r.append(f'v_max_f32 v{d}, v{s0+15}, v{d}')
        return r
    def bcast(h, d, bias):
        K.e(f'v_mov_b32 v3, v{d}\nv_permlane32_swap_b32 v{d}, v3\nv_max_f32 v{d}, v{d}, v3\nv_sub_f32 v{NM[h]}, {f2h(-bias)}, v{d}')
        for i in range(1, 16): K.e(f'v_mov_b32 v{NM[h]+i}, v{NM[h]}')
    a0 = qk(0, F[1], '0'); b0 = qk(1, F[1], '0')
    K.e([a0[0], b0[0], a0[1], b0[1]])
    for h in range(2): K.e(rowmax(h, 1 + h, True)); bcast(h, 1 + h, opt.get('bias', 64.0))
    K.e(f'{name}_att:')
    K.e(qk(0, F[1], v(NM[0], 16)))
    for h in range(2):
        for i in range(16): K.e(f'v_mov_b32 v{O[h]+i}, 0')
        for i in range(4): K.e(f'v_mov_b32 v{L[h]+i}, 0')
    K.e(f's_mov_b32 s43, 0\nv_mov_b32 v{VRD}, v{VB2}')
    K.e(f's_lshl_b32 s57, s3, 14\ns_lshl_b32 s58, s10, 2\ns_add_u32 s58, s58, s3\ns_mul_i32 s58, s58, {64*7168}\ns_lshl_b32 s16, s11, 8\ns_add_u32 s58, s58, s16')
    K.e('@waitvm R0\ns_barrier')
    def freads(fb, off): return [f'ds_read_b128 {fr(fb+4*i,4)}, v{VRD} offset:{off+1024*i}' for i in (2, 0, 3, 1)]
    K.e(freads(F[0], 0))
    UN = 2
    pre = spread(qk(1, F[1], v(NM[1], 16)), ex(0)[:-4])
    pre[1].insert(1, '@waitlg all')
    K.e(flatten(pre))
    def order(q, p, l):
        d = dict(q=list(q), p=list(p), l=list(l))
        return [d[c].pop(0) for c in 'qplqpl']
    def loop(lab, n, job, vmw):
        K.e(f's_mov_b32 s18, {n // UN}')
        K.e(f'@save {lab}\n@loophead {lab}\n.p2align 6\n@alon\n{name}_{lab}:')
        sl = []; gap = {}
        def put(g, x):
            assert g not in gap, (g, x, gap[g])
            gap[g] = x
        for sg in range(UN):
            for u in range(4):
                fb = F[u & 1]; nb = F[1 - (u & 1)]; g0 = len(sl)
                sl += spread(order(qk(0, fb, v(NM[0], 16)), pv(0, fb), ls(0)), ex(1)) + spread(order(qk(1, fb, v(NM[1], 16)), pv(1, fb), ls(1)), ex(0))
                last = sg == UN - 1
                if u < 3:
                    for k, x in enumerate(freads(nb, 16384 * sg + 4096 * (u + 1))): put(g0 + 1 + k, x)
                else:
                    put(g0, f's_waitcnt vmcnt({vmw[sg] if isinstance(vmw, tuple) else vmw})'); put(g0 + 1, 's_barrier')
                    for k, x in enumerate(freads(nb, 0 if last else 16384 * (sg + 1))): put(g0 + 2 + k, x)
                    for k in range(4):
                        if job == 'wo': put(g0 + 6 + k, f'buffer_load_dwordx4 v{VDO+k}, s[52:55], s42 offen offset:{1024*k} lds')
                        else: put(g0 + 6 + k, f'buffer_load_dwordx4 v{VL}, s[28:31], s42 offen offset:{1024*k} lds')
                put(g0 + 10, '@waitlg all')
                if u == 2:
                    put(g0 + 5, 's_add_u32 s42, s42, 16384' if job != 'wo' else f'v_readlane_b32 s42, v{VP4}, s17')
                    put(g0 + 6, 's_add_u32 m0, s43, s56'); put(g0 + 7, 's_add_u32 s43, s43, 16384'); put(g0 + 8, 's_and_b32 s43, s43, 0xffff')
                    if last: sl[g0 + 9].append(f'v_add_u32 v{VRD}, s43, v{VB2}')
                    if last: put(g0 + 9, 's_sub_u32 s18, s18, 1'); put(g0 + 11, 's_cmp_lg_u32 s18, 0')
                if job == 'slab' and u == 0:
                    put(g0 + 5, 's_mov_b32 m0, s57'); put(g0 + 6, 's_add_u32 s57, s57, 2048')
                    put(g0 + 7, f'buffer_load_dwordx4 v{VS0}, s[32:35], s58 offen lds')
                    put(g0 + 8, f'buffer_load_dwordx4 v{VS0+1}, s[32:35], s58 offen offset:1024 lds')
                    put(g0 + 9, f's_add_u32 s58, s58, {8*7168}')
                if job == 'wo' and u == 0:
                    put(g0, f'v_readlane_b32 s58, v{VP4}, s16'); put(g0 + 5, 's_mov_b32 m0, s57')
                    for k, g in enumerate((6, 7, 8, 9)): put(g0 + g, f'buffer_load_dwordx4 v{VDO+k}, s[52:55], s58 offen offset:{1024*k} lds')
                    put(g0 + 11, 's_add_u32 s57, s57, 16384')
                if job == 'wo' and u == 1:
                    put(g0 + 5, 's_add_u32 s17, s16, 4'); put(g0 + 6, 's_add_u32 s16, s16, 1')
        for g, x in gap.items(): sl[g].insert(1, x)
        tail = sl[-1][1:]; assert len(tail) == 4
        K.e(tail); K.e(flatten(sl)[:-4])
        K.e(f's_cbranch_scc1 {name}_{lab}\n@aloff\n@check {lab} lg\n@loopend {lab}')
    loop('l1', 8, 'slab', 10)
    for st in range(8):
        for tt in range(2): K.e(f'buffer_load_dwordx2 {a(4*st+2*tt,2)}, v{VM}, s[44:47], 0 offen offset:{64*st+32*tt}')
    VX = 52; VG = 68; VC = 84; VA2 = 51; AP = 208
    srd(K, 20, 64, 0, 2048 * 2048)
    srd(K, 24, 8, WS_MOD, 6144 * 4)
    K.e(['v_and_b32 v1, 15, v0', 'v_lshlrev_b32 v1, 11, v1', 'v_bfe_u32 v2, v0, 4, 1', 'v_lshl_add_u32 v1, v2, 5, v1',
         'v_lshrrev_b32 v2, 5, v0', 'v_lshl_add_u32 v1, v2, 4, v1', 's_lshl_b32 s18, s15, 15', 's_add_u32 s18, s18, s14', 's_add_u32 s19, s18, 32768',
         'v_lshrrev_b32 v2, 4, v0', 'v_lshlrev_b32 v2, 4, v2', 's_lshl_b32 s16, s14, 1', f's_add_u32 s17, s16, {4 * 4096}', f's_add_u32 s16, s16, {2 * 4096}'])
    for nt in range(2):
        for aa in range(2): K.e(f'buffer_load_dwordx4 {a(AP + 8*nt + 4*aa, 4)}, v1, s[20:23], s{18+nt} offen offset:{64*aa}')
    for mt in range(4): K.e(f'buffer_load_dwordx4 {a(AP + 16 + 4*mt, 4)}, v2, s[24:27], s16 offen offset:{64*mt}')
    for mt in range(4): K.e(f'buffer_load_dwordx4 {a(AP + 32 + 4*mt, 4)}, v2, s[24:27], s17 offen offset:{64*mt}')
    K.e(f'buffer_load_dword v{VJK}, v{VJ}, s[52:55], s7 offen')
    srd(K, 20, 100, 0, 3584 * 2048)
    K.e(f's_lshl_b32 s16, s7, 2\nv_lshlrev_b32 v1, 1, v{VJ}')
    K.e(f'buffer_load_dword v{VJK+1}, v1, s[20:23], s16 offen\ns_add_u32 s16, s16, 4096\nbuffer_load_dword v{VJK+2}, v1, s[20:23], s16 offen')
    loop('l2', 4, None, (36, 8))
    sc = ' sc1' if upto >= 5 else ''
    K.e(f's_cmp_ge_u32 s2, 224\ns_cbranch_scc1 {name}_nout')
    K.e('@save c')
    for st in range(8):
        for e in range(2):
            for tt in range(2): K.e(f'ds_read_b64_tr_b16 {a(32+8*st+4*e+2*tt,2)}, v{VU+e} offset:{8192*st+4096*tt}')
    K.e('s_lshl_b32 s16, s11, 3\ns_lshl_b32 s17, s3, 1\ns_add_u32 s16, s16, s17\ns_lshl_b32 s16, s16, 10\ns_lshl_b32 s17, s10, 8\ns_add_u32 s16, s16, s17\ns_add_u32 s16, s16, s97')
    for st in range(8):
        for e in range(2): K.e(f'{MF} {v(8+4*e,4)}, {a(4*st,4)}, {a(32+8*st+4*e,4)}, ' + ('0' if st == 0 else v(8+4*e,4)))
    K.e('s_barrier')
    for e in range(2):
        b = 8 + 4 * e
        K.e(f'v_cvt_pk_bf16_f32 v{b+2}, v{b}, v{b+1}\nv_and_b32 v{b}, 0xffff0000, v{b+2}\nv_sub_f32 v{b+1}, v{b+1}, v{b}\nv_cvt_pk_bf16_f32 v{b+3}, v{b+1}, v{b}')
    K.e('s_mov_b64 exec, 0xffff')
    for e in range(2): K.e(f'buffer_store_dwordx2 {v(10+4*e,2)}, v{VL}, s[48:51], s16 offen offset:{1024*e}{sc}')
    K.e('s_mov_b64 exec, -1')
    K.e(f'{name}_nout:\n@restore c')
    if upto >= 5: K.e(flatten(dma5(0, 16, True)))
    K.e('s_lshl_b32 s57, s3, 12\ns_mov_b32 s16, 0')
    loop('l4', 4, 'wo', 19 if upto >= 5 else 12)
    ST('attn')
    K.e('s_lshl_b32 s16, s15, 15\ns_lshl_b32 s17, s13, 11\ns_add_u32 s16, s16, s17')
    for h in range(2):
        K.e(f'v_rcp_f32 v4, v{L[h]}\ns_nop 0\nv_mov_b32 v5, v4')
        for hh in range(2):
            o = O[h] + 8 * hh
            for j in range(0, 8, 2): K.e(f'v_pk_mul_f32 {v(o+j,2)}, {v(o+j,2)}, v[4:5]')
            for j in range(0, 8, 2): K.e(f'v_cvt_pk_bf16_f32 v{o+j//2}, v{o+j}, v{o+j+1}')
            K.e(f'buffer_store_dwordx4 {v(o,4)}, v{VO}, s[36:39], s16 offen offset:{1024*h+512*hh} sc1')
    if 'o' in opt.get('dbl', ''):
        for h in range(2):
            for hh in range(2): K.e(f'buffer_store_dwordx4 {v(O[h] + 8 * hh,4)}, v{VO}, s[36:39], s16 offen offset:{1024*h+512*hh}')
    K.e(f'v_lshl_add_u32 v{VA2}, v0, 4, s16')
    K.e(f's_mov_b32 s16, {f2h(2.0**60)}')
    K.e(f'v_cmp_nle_f32 vcc, v{L[0]}, s16\nv_cmp_nle_f32 s[18:19], v{L[1]}, s16\ns_or_b64 vcc, vcc, s[18:19]')
    K.e(f's_cmp_lg_u64 vcc, 0\ns_cselect_b32 s16, 1, 0\nv_mov_b32 v1, s16\ns_lshl_b32 s16, s3, 2\ns_add_u32 s16, s16, {FLAG}\nv_mov_b32 v2, s16')
    K.e('ds_write_b32 v2, v1')
    G4.srdB = 36
    G4.setup_b(0, 15, 1, 2)
    srd(K, 28, 8, WS_FLAG, F_SIZE)
    K.e(f'v_mov_b32 v2, {FLAG}')
    K.e('@waitall\ns_barrier')
    K.e('ds_read_b128 v[4:7], v2')
    K.e('v_or3_b32 v4, v4, v5, v6\nv_or_b32 v4, v4, v7\nv_readfirstlane_b32 s16, v4')
    K.e(f's_cmp_gt_u32 s16, s12\ns_cbranch_scc1 {name}_fb')
    publish(K, 28, VFA, VFT, 2)
    ST('pubO')
    K.e('s_mov_b32 s42, 32768')
    for j in range(48): K.e(f'v_accvgpr_read_b32 v{VX+j}, a{AP+j}')
    poll(K, 28, VFP, VFT, 16, opt.get('sleep', 0), opt.get('one', 2), ST)
    ST('gotO')
    G4.issue_b(G4.R)
    side = {}
    if upto >= 5:
        d = dma5(1, 16, True) + dma5(2, 16)
        side[15] = ['s_barrier']
        for k, g in enumerate(d): side[17 + k // 2] = side.get(17 + k // 2, []) + [g]
    G4.main(side, bper=opt.get('bper', 3), start_barrier=False)
    ST('k4')
    T = 100; S_ = 108; PK = 116
    srd(K, 44, 8, WS_X1S, 0x400000)
    srd(K, 48, 8, WS_STATS, 128 * 16 * 128)
    if upto < 6: srd(K, 36, 8, WS_X1, 0x400000)
    for nt in range(2):
        for aa in range(2):
            X = VX + 8 * nt + 4 * aa; PP = PK + 4 * aa
            K.e(f'v_permlane16_swap_b32 v{X}, v{X+2}\nv_permlane16_swap_b32 v{X+1}, v{X+3}')
            for e in range(2):
                mt = 2 * aa + e; A0 = G4.acc(mt, nt)
                K.e(unpack(T, X + 2 * e) + unpack(T + 2, X + 2 * e + 1))
                for j in (0, 2): K.e(f'v_pk_fma_f32 {v(A0+j,2)}, {v(A0+j,2)}, {v(VG+4*mt+j,2)}, {v(T+j,2)}')
                for j in (0, 2): K.e(f'v_pk_mul_f32 {v(T+j,2)}, {v(A0+j,2)}, {v(VC+4*mt+j,2)}')
                K.e(f'v_cvt_pk_bf16_f32 v{PP+2*e}, v{T}, v{T+1}\nv_cvt_pk_bf16_f32 v{PP+2*e+1}, v{T+2}, v{T+3}')
            K.e(f'buffer_store_dwordx4 {v(PP,4)}, v{VA2}, s[44:47], {"s42" if nt else "0"} offen offset:{1024*aa}{sc}')
            if 'x' in opt.get('dbl', ''): K.e(f'buffer_store_dwordx4 {v(PP,4)}, v{VA2}, s[44:47], {"s42" if nt else "0"} offen offset:{1024*aa}')
    for nt in range(2):
        for mt in range(4):
            A0 = G4.acc(mt, nt)
            for j in (0, 2):
                if mt == 0 and j == 0:
                    K.e(f'v_pk_add_f32 {v(S_+4*nt,2)}, {v(A0,2)}, {v(A0+2,2)}\nv_pk_mul_f32 {v(S_+4*nt+2,2)}, {v(A0,2)}, {v(A0,2)}')
                    continue
                if mt: K.e(f'v_pk_add_f32 {v(S_+4*nt,2)}, {v(S_+4*nt,2)}, {v(A0+j,2)}')
                K.e(f'v_pk_fma_f32 {v(S_+4*nt+2,2)}, {v(A0+j,2)}, {v(A0+j,2)}, {v(S_+4*nt+2,2)}')
    for nt in range(2):
        K.e(f'v_add_f32 v{S_+4*nt}, v{S_+4*nt}, v{S_+4*nt+1}\nv_add_f32 v{S_+4*nt+1}, v{S_+4*nt+2}, v{S_+4*nt+3}')
    K.e(f'v_permlane32_swap_b32 v{S_}, v{S_+4}\nv_permlane32_swap_b32 v{S_+1}, v{S_+5}')
    K.e(f'v_add_f32 v{S_}, v{S_}, v{S_+4}\nv_add_f32 v{S_+1}, v{S_+1}, v{S_+5}')
    K.e(f'v_mov_b32 v{S_+2}, v{S_}\nv_mov_b32 v{S_+3}, v{S_+1}')
    K.e(f'v_permlane16_swap_b32 v{S_}, v{S_+2}\nv_permlane16_swap_b32 v{S_+1}, v{S_+3}')
    K.e(f'v_add_f32 v{S_}, v{S_}, v{S_+2}\nv_add_f32 v{S_+1}, v{S_+1}, v{S_+3}')
    K.e('v_and_b32 v1, 15, v0\nv_lshlrev_b32 v1, 3, v1\nv_lshrrev_b32 v2, 5, v0\nv_lshl_add_u32 v1, v2, 11, v1')
    K.e('v_bfe_u32 v2, v0, 4, 1\nv_lshl_add_u32 v1, v2, 30, v1')
    K.e('s_lshl_b32 s18, s15, 11\ns_lshl_b32 s19, s13, 7\ns_add_u32 s18, s18, s19')
    K.e(f'buffer_store_dwordx2 {v(S_,2)}, v1, s[48:51], s18 offen{sc}')
    for nt in range(2):
        for aa in range(2):
            X = VX + 8 * nt + 4 * aa
            for e in range(2):
                A0 = G4.acc(2 * aa + e, nt)
                K.e(f'v_cvt_pk_bf16_f32 v{X+2*e}, v{A0}, v{A0+1}\nv_cvt_pk_bf16_f32 v{X+2*e+1}, v{A0+2}, v{A0+3}')
            if upto < 6: K.e(f'buffer_store_dwordx4 {v(X,4)}, v{VA2}, s[36:39], {"s42" if nt else "0"} offen offset:{1024*aa}')
            else:
                for j in range(4): K.e(f'v_accvgpr_write_b32 a{AX1 + 8*nt + 4*aa + j}, v{X+j}')
    if upto >= 5:
        from mega5 import phase5
        phase5(K, ST, opt, VFA, VFP, VFT)
    if ST.on: K.e('@waitall'); ST('end'); ST.dump(8)
    K.e('s_endpgm')
    K.e(f'{name}_fb:\n@clear\n@hzreset\ns_waitcnt vmcnt(0) lgkmcnt(0)')
    srd(K, 28, 8, WS_KV, 0x40000)
    K.e('s_mov_b32 s12, 1\ns_mov_b32 s18, 0\nv_mov_b32 v1, 0xff800000\nv_mov_b32 v2, 0xff800000')
    K.e(f'@save fb\n@loophead fb\n{name}_fbl:')
    for b in range(2): K.e(f'buffer_load_dwordx4 {fr(F[1]+8+4*b,4)}, v{VL}, s[28:31], s18 offen offset:{1024*b}')
    K.e([a0[0], b0[0], a0[1], b0[1]])
    for h in range(2): K.e(rowmax(h, 1 + h, False))
    K.e(f's_add_u32 s18, s18, 4096\ns_cmp_lt_u32 s18, 0x40000\ns_cbranch_scc1 {name}_fbl\n@check fb\n@loopend fb')
    for h in range(2): bcast(h, 1 + h, 0.0)
    K.e(flatten(ring_pro()))
    K.e(f'@waitall\ns_nop 1\ns_branch {name}_att')
    finish(K)
    K.align = 'all'
    return K, (name, 256, 256, FLAG + 16)
```

```python
from mega import *
def phase5(K, ST, opt, VFA, VFP, VFT):
    upto = opt.get('upto', 6); name = K.name
    R = opt.get('R5', 8); NST = 16; NS = 5; TL = opt.get('tail', 3)
    VD = VD5; VB = 231; VT = 235; VS = 238; VR = 248
    AA = 0; AB = 56; AX = AB + 16 * R; AU = AX + 8
    def acc(up, i, nt): return 4 * ((7 * up + i) * 4 + nt)
    K.e(f's_lshr_b32 s16, s15, 3\ns_lshl_b32 s16, s16, {5+FSH}\ns_lshl_b32 s17, s13, {FSH}\ns_add_u32 s16, s16, s17\ns_add_u32 s16, s16, {F_X}\nv_mov_b32 v{VFA}, s16')
    K.e(f's_lshr_b32 s16, s{S5T}, 3\n' + ('s_and_b32 s16, s16, -2\n' if opt.get('one', 2) else '') + f's_lshl_b32 s16, s16, {5+FSH}\ns_add_u32 s16, s16, {F_X}\nv_and_b32 v1, 15, v0\nv_lshl_add_u32 v2, v1, {FSH}, s16')
    if opt.get('one', 2): K.e(f'v_lshrrev_b32 v3, 5, v0\nv_lshl_add_u32 v2, v3, {5+FSH}, v2')
    K.e(f's_mul_i32 s43, s{S5N}, 7\nv_bfe_u32 v3, v0, 2, 1\nv_mul_u32_u24 v3, 6, v3\nv_add_u32 v3, s43, v3\nv_lshrrev_b32 v3, 3, v3')
    K.e(f'v_bfe_u32 v4, v0, 3, 1\nv_mul_u32_u24 v4, 28, v4\nv_add_u32 v3, v3, v4\nv_and_b32 v4, 3, v0\nv_lshl_add_u32 v3, v3, 2, v4\nv_lshlrev_b32 v3, {FSH}, v3\nv_add_u32 v3, {F_U}, v3')
    K.e(f'v_and_b32 v4, 16, v0\nv_cmp_eq_u32 vcc, 0, v4\nv_cndmask_b32 v{VFP}, v3, v2, vcc')
    K.e(f's_lshl_b32 s16, s{S5T}, 15\nv_lshl_add_u32 v{VB}, v0, 4, s16')
    for nt in range(1, 4): K.e(f'v_add_u32 v{VB+nt}, {nt * 0x8000}, v{VB}')
    K.e(f'v_lshrrev_b32 v2, 2, v0\nv_mul_u32_u24 v2, 224, v2\nv_and_b32 v3, 3, v0\nv_lshl_add_u32 v{VT}, v3, 3, v2')
    K.e(f'v_add_u32 v{VT+1}, {2*STG}, v{VT}\nv_add_u32 v{VT+2}, {SLOT5[0]}, v{VT}')
    K.e(f'v_lshrrev_b32 v1, 4, v0\nv_and_b32 v2, 15, v0\nv_lshlrev_b32 v2, 3, v2\nv_lshl_add_u32 v{VS+8}, v1, 9, v2')
    SW = 40; SB = 41
    K.e(f's_mov_b32 s{SW}, {3*64*7168}\ns_add_u32 m0, s{S5M}, {SLOT5[3]}\ns_mov_b32 s{SB}, 0')
    srd(K, 24, 8, WS_X1S, 0x400000)
    srd(K, 32, 8, WS_STATS, 128 * 16 * 128)
    srd(K, 36, 8, WS_UTF, 224 * 1024)
    K.e(f's_lshl_b32 s42, s{S5T}, 11\ns_and_b32 s19, s{S5N}, 1')
    K.e('s_add_u32 s44, s43, s19\ns_lshl_b32 s45, s44, 10')
    K.e('s_cmp_eq_u32 s19, 0\ns_cselect_b32 s46, 6, 0\ns_add_u32 s46, s46, s43\ns_lshl_b32 s47, s46, 10')
    K.e('@waitall\ns_barrier')
    publish(K, 28, VFA, VFT)
    ST('pubX')
    def bload(T):
        L = []
        for nt in range(4):
            off = f' offset:{1024*(T%4)}' if T % 4 else ''
            g = [f'buffer_load_dwordx4 {a(AB + 16*(T%R) + 4*nt, 4)}, v{VB+nt}, s[24:27], s{SB} offen{off} sc1']
            if nt == 3 and T % 4 == 3: g.append(f's_add_u32 s{SB}, s{SB}, 4096')
            L.append(g)
        return L
    def areads(t):
        st = t // 4; slot = st % NS; up = t % 2; L = []
        vt, base = {0: (2, 0), 1: (0, 0), 2: (0, STG), 3: (1, 0), 4: (1, STG)}[slot]
        for i in range(7):
            for tt in range(2):
                off = base + up * UPO + (32 * ((t // 2) % 2) + 16 * tt) * 224 + 32 * i
                L.append(f'ds_read_b64_tr_b16 {a(AA + 28*up + 4*i + 2*tt, 2)}, v{VT + vt} offset:{off}')
        return L
    K.e(areads(0))
    poll(K, 28, VFP, VFT, 16, opt.get('sleep', 0), opt.get('one', 2), ST)
    ST('gotX')
    Q = []
    for st in range(NST):
        if st >= 3:
            for g in dma5(st, SW): Q.append((4 * st - 1, 4 * (st - NS) + 3 if st >= NS else -1, g))
        for T in (2 * st, 2 * st + 1):
            for g in bload(T): Q.append((2 * T, 2 * (T - R + 1) if T >= R else -1, g))
    for _ in range(4 * 6): K.e(Q.pop(0)[2])
    def stats_loads(nt):
        L = [f'buffer_load_dwordx2 {v(VS+2*i, 2)}, v{VS+8}, s[32:35], s42 offen offset:{128*i} sc1' for i in range(4)]
        return L + ['s_add_u32 s42, s42, 2048']
    def stats_math(nt):
        return [f'v_add_f32 v{VS}, v{VS}, v{VS+2}', f'v_add_f32 v{VS+1}, v{VS+1}, v{VS+3}',
              f'v_add_f32 v{VS+4}, v{VS+4}, v{VS+6}', f'v_add_f32 v{VS+5}, v{VS+5}, v{VS+7}',
              f'v_add_f32 v{VS}, v{VS}, v{VS+4}', f'v_add_f32 v{VS+1}, v{VS+1}, v{VS+5}',
              f'v_mov_b32 v{VS+2}, v{VS}', f'v_mov_b32 v{VS+3}, v{VS+1}',
              f'v_permlane32_swap_b32 v{VS}, v{VS+2}', f'v_permlane32_swap_b32 v{VS+1}, v{VS+3}',
              f'v_add_f32 v{VS}, v{VS}, v{VS+2}', f'v_add_f32 v{VS+1}, v{VS+1}, v{VS+3}',
              f'v_mov_b32 v{VS+2}, v{VS}', f'v_mov_b32 v{VS+3}, v{VS+1}',
              f'v_permlane16_swap_b32 v{VS}, v{VS+2}', f'v_permlane16_swap_b32 v{VS+1}, v{VS+3}',
              f'v_add_f32 v{VS}, v{VS}, v{VS+2}', f'v_add_f32 v{VS+1}, v{VS+1}, v{VS+3}',
              f'v_mul_f32 v{VS}, {f2h(-1.0/1024)}, v{VS}',
              f'v_mul_f32 v{VS+1}, {f2h(1.0/1024)}, v{VS+1}',
              f'v_fma_f32 v{VS+1}, -v{VS}, v{VS}, v{VS+1}',
              f'v_max_f32 v{VS+1}, 0, v{VS+1}',
              f'v_add_f32 v{VS+1}, {f2h(1e-5)}, v{VS+1}',
              f'v_sqrt_f32 v{VR+4+nt}, v{VS+1}', f'v_rsq_f32 v{VR+nt}, v{VS+1}',
              f'v_cvt_pk_bf16_f32 v{VS+2}, v{VS}, v{VR+4+nt}',
              f'v_mul_f32 v{VR+nt}, {f2h(-LOG2E)}, v{VR+nt}',
              f'v_and_b32 v{VS+3}, 0xffff0000, v{VS+2}',
              f'v_sub_f32 v{VS+4}, v{VR+4+nt}, v{VS+3}',
              f'v_cvt_pk_bf16_f32 v{VS+3}, v{VS+3}, v{VS+4}',
              f'v_accvgpr_write_b32 a{AX+2*nt}, v{VS+2}', f'v_accvgpr_write_b32 a{AX+2*nt+1}, v{VS+3}']
    def ut_loads():
        L = [f'v_and_b32 v{VS}, 0x3f0, v{VB}']
        for i in range(6):
            if i == 4: L.append('s_add_u32 s45, s45, 4096')
            L.append(f'buffer_load_dwordx4 {a(AU+4*i, 4)}, v{VS}, s[36:39], s45 offen offset:{1024*(i%4)} sc1')
        L.append(f'buffer_load_dwordx4 {a(AU+24, 4)}, v{VS}, s[36:39], s47 offen sc1')
        return L
    side = {}
    for nt in range(4):
        side[2 + 10 * nt] = stats_loads(nt)
        m = stats_math(nt)
        for k in range(3): side[2 + 10 * nt + 7 + k] = m[11 * k: 11 * k + 11]
    side[42] = ut_loads()
    G6 = None
    if upto >= 6:
        VL6 = 245; VP6 = 246
        G6 = GW(K, 4, 112, 'p16', dict(acc=4, vd=239, vb=40, vt=42, aa=0, ab=48), 4, 16, bflag=' sc1', srdW=52, srdB=24, sW=56, sB=41, sM=57, tag='D', slots=[0, 16384, 32768, 114688])
        G6.VP = VP6
        tmp = Kernel('tmp'); G6.K = tmp
        tmp.e(f'v_bfe_u32 v{VL6}, v{VB}, 4, 6\ns_lshr_b32 s11, s2, 3')
        perm_table(tmp, VP6, 28, 'lead', 243, 244, vl=VL6, sa=16, sb=17)
        srd(tmp, 52, 100, 0, 3584 * 2048)
        G6.setup_w(VL6, 3, 14, 243, 244)
        G6.K = K
        L = [I.text for I in tmp.ins]
        m0i = [k for k, x in enumerate(L) if x.startswith('s_mov_b32 m0')][0]; m0set = L.pop(m0i)
        per = (len(L) + 5) // 6
        for k in range(6): side[44 + k] = L[per * k: per * k + per]
        d = [g for st_, g in G6.QW[:16]]; G6.QW = G6.QW[16:]
        d6 = [[m0set] + d[0]] + d[1:]
    else: d6 = []
    sc = ' sc1' if upto >= 6 else ''
    tmp = Kernel('tmp')
    srd(tmp, 28, 8, WS_HH, 128 * 112 * 1024)
    tmp.e(f's_mul_i32 s42, s{S5T}, {112*1024}\ns_lshl_b32 s44, s44, 9\ns_add_u32 s44, s44, s42')
    tmp.e(f's_lshr_b32 s46, s46, 1\ns_lshl_b32 s46, s46, 10\ns_add_u32 s46, s46, s42\ns_lshl_b32 s19, s19, 3\ns_add_u32 s46, s46, s19')
    side[50] = [I.text for I in tmp.ins]
    T2 = 4 * (NST - TL)
    order = [6, 0, 1, 2, 3, 4, 5]
    grp = [(i, T, up) for i in order for T in range(T2 // 2, 2 * NST) for up in range(2)]
    def gread(g):
        i, T, up = grp[g]
        return [x.replace(a(AA + 28*up + 4*i + 2*tt, 2), a(AA + 4 * (g % 14) + 2 * tt, 2)) for tt, x in enumerate(areads(2 * T + up)[2 * i: 2 * i + 2])]
    D = 7
    maxper = opt.get('maxper5', 6)
    for t in range(T2):
        st, ks = t // 4, t % 4; up = t % 2; T = t // 2
        slots = []
        for i in range(7):
            for k in range(4):
                nt = k if i % 2 == 0 else 3 - k
                d_ = v(acc(up, i, nt), 4); c = '0' if t < 2 else d_
                slots.append([f'{MF} {d_}, {a(AA + 28*up + 4*i, 4)}, {a(AB + 16*(T%R) + 4*nt, 4)}, {c}'])
        pre = []
        if ks == 3: pre = ['@waitlg all', f'@waitvm G{st+1}' if t + 1 < T2 else f'@waitvm G{NST-1}', 's_barrier']
        interleave(slots, areads(t + 1) if t + 1 < T2 else flatten([gread(g) for g in range(D)]), 0, 1, 2)
        vm = []
        while Q and len(vm) < maxper and Q[0][1] <= t: vm.append(Q.pop(0)[2])
        if vm: interleave(slots, vm, 1, 1, 2 * max(1, 14 // len(vm)))
        if t == T2 - 2: assert not any('lds' in str(q[2][0]) for q in Q)
        if t == T2 - 1: side[t] = side.get(t, []) + [f'v_and_b32 v{VD}, 0x3f0, v{VB}'] + [f'v_add_u32 v{VD+nt}, {nt*112*1024}, v{VD}' for nt in range(1, 4)]
        if t in side: interleave(slots, side[t], 3, 1, 2)
        K.e(pre); K.e(flatten(slots))
    ST('k5')
    def epi(i, last=False):
        E = [[] for _ in range(7)]
        pk = last and opt.get('pklast', 1)
        for nt in range(4):
            G0 = acc(0, i, nt); U0 = acc(1, i, nt)
            E[0] += [f'v_mul_f32 v{G0+j}, v{VR+nt}, v{G0+j}' for j in range(4)]
            E[1] += [f'v_exp_f32 v{G0+j}, v{G0+j}' for j in range(4)]
            E[2] += [f'v_fma_f32 v{G0+j}, v{G0+j}, v{VR+4+nt}, v{VR+4+nt}' for j in range(4)]
            E[3] += [f'v_rcp_f32 v{G0+j}, v{G0+j}' for j in range(4)]
            if pk: E[4] += [f'v_pk_mul_f32 {v(G0+j,2)}, {v(G0+j,2)}, {v(U0+j,2)}' for j in (0, 2)]
            else: E[4] += [f'v_mul_f32 v{G0+j}, v{G0+j}, v{U0+j}' for j in range(4)]
            P = acc(1, i & ~1, nt) + 2 * (i & 1)
            E[5] += [f'v_cvt_pk_bf16_f32 v{P}, v{G0}, v{G0+1}', f'v_cvt_pk_bf16_f32 v{P+1}, v{G0+2}, v{G0+3}']
            if i & 1: E[5].append(f'buffer_store_dwordx4 {v(P-2,4)}, v{VD+nt}, s[28:31], s44 offen offset:{1024*(i//2)}{sc}')
            if i == 6: E[5].append(f'buffer_store_dwordx2 {v(P,2)}, v{VD+nt}, s[28:31], s46 offen{sc}')
        if opt.get('mixepi', 1):
            h = lambda L, k: L[len(L) * k // 2: len(L) * (k + 1) // 2]
            def mix(x, y):
                o = []
                for k in range(max(len(x), len(y))): o += x[k:k+1] + y[k:k+1]
                return o
            return h(E[0], 0) + mix(h(E[1], 0), h(E[0], 1)) + mix(h(E[1], 1), h(E[2], 0)) + mix(h(E[3], 0), h(E[2], 1)) + mix(h(E[3], 1), h(E[4], 0)) + h(E[5], 0) + h(E[4], 1) + h(E[5], 1)
        return flatten(E)
    npg = len(grp) // 7; pend = []
    for n, i in enumerate(order):
        slots = []
        for g in range(n * npg, (n + 1) * npg):
            _, T, up = grp[g]; k0 = len(slots)
            for k in range(4):
                nt = k if g % 2 == 0 else 3 - k
                d_ = v(acc(up, i, nt), 4)
                slots.append([f'{MF} {d_}, {a(AA + 4 * (g % 14), 4)}, {a(AB + 16*(T%R) + 4*nt, 4)}, {d_}'])
            if g + D < len(grp):
                r = gread(g + D); slots[k0].append(r[0]); slots[k0 + 2].append(r[1])
        for up in range(2):
            for nt in range(4):
                d_ = v(acc(up, i, nt), 4)
                slots.append([f'v_mfma_f32_16x16x16_bf16 {d_}, {a(AU + 4*i + 2*up, 2)}, {a(AX + 2*nt, 2)}, {d_}'])
        vm = [q[2] for q in Q]; Q = []
        if n < 2: vm += d6[8 * n: 8 * n + 8]
        if vm: interleave(slots, vm, 1, 1, 4)
        ns = len(slots) - 8 - 3
        for k, x in enumerate(pend): slots[3 + k * ns // len(pend)].append(x)
        K.e(flatten(slots))
        pend = epi(i, n == 6)
    K.e(pend)
    if upto >= 6: phase6(K, ST, opt, G6, VL6)

def phase6(K, ST, opt, G, VL6):
    VFA, VFP, VFT = 228, 229, 230
    ST('e5')
    K.e(f'v_mov_b32 v0, v{VL6}')
    srd(K, 32, 8, WS_FLAG, F_SIZE)
    K.e(f's_lshr_b32 s16, s{S5T}, 4\ns_lshl_b32 s16, s16, {5+FSH}\ns_lshl_b32 s17, s{S5N}, {FSH}\ns_add_u32 s16, s16, s17\ns_add_u32 s16, s16, {F_H}\nv_mov_b32 v{VFA}, s16')
    K.e(f's_lshr_b32 s16, s15, 4\ns_lshl_b32 s16, s16, {5+FSH}\ns_add_u32 s16, s16, {F_H}\nv_and_b32 v1, 31, v0\nv_lshl_add_u32 v{VFP}, v1, {FSH}, s16')
    K.e(f's_load_dwordx2 s[6:7], s[0:1], {KA["out"]}')
    srd(K, 24, 8, WS_HH, 128 * 112 * 1024)
    G.setup_b(0, 15, 1, 2)
    VX = 52; VG = 68; VA = 50
    srd(K, 36, 8, WS_MOD, 6144 * 4)
    K.e(['v_and_b32 v1, 15, v0', 'v_lshlrev_b32 v1, 11, v1', 'v_bfe_u32 v2, v0, 4, 1', 'v_lshl_add_u32 v1, v2, 5, v1',
         'v_lshrrev_b32 v2, 5, v0', 'v_lshl_add_u32 v1, v2, 4, v1', 's_lshl_b32 s18, s15, 15', 's_add_u32 s18, s18, s14',
         f'v_add_u32 v{VA}, s18, v1', 's_mov_b32 s42, 32768',
         'v_lshrrev_b32 v2, 4, v0', 'v_lshlrev_b32 v2, 4, v2', 's_lshl_b32 s19, s14, 1', 'v_add_u32 v3, s19, v2', f's_mov_b32 s43, {5 * 4096}'])
    srd(K, 20, 6, 0, 2048 * 2048)
    K.e('@waitall\ns_barrier')
    publish(K, 32, VFA, VFT)
    ST('pubH')
    for mt in range(4): K.e(f'buffer_load_dwordx4 {v(VG + 4*mt, 4)}, v3, s[36:39], s43 offen offset:{64*mt}' + (' sc1' if opt.get('f1') else ''))
    for j in range(16): K.e(f'v_accvgpr_read_b32 v{VX+j}, a{AX1+j}')
    poll(K, 32, VFP, VFT, 16, opt.get('sleep', 0), opt.get('one', 2), ST)
    ST('gotH')
    G.issue_b(opt.get('pro6', 8))
    G.main({}, bper=opt.get('bper', 3), wper=opt.get('wper'), start_barrier=False)
    ST('k6')
    T = 100
    for nt in range(2):
        for aa in range(2):
            X = VX + 8 * nt + 4 * aa
            for e in range(2):
                mt = 2 * aa + e; A0 = G.acc(mt, nt)
                K.e(unpack(T, X + 2 * e) + unpack(T + 2, X + 2 * e + 1))
                for j in (0, 2): K.e(f'v_pk_fma_f32 {v(A0+j,2)}, {v(A0+j,2)}, {v(VG+4*mt+j,2)}, {v(T+j,2)}')
                K.e(f'v_cvt_pk_bf16_f32 v{X+2*e}, v{A0}, v{A0+1}\nv_cvt_pk_bf16_f32 v{X+2*e+1}, v{A0+2}, v{A0+3}')
            K.e(f'v_permlane16_swap_b32 v{X}, v{X+2}\nv_permlane16_swap_b32 v{X+1}, v{X+3}')
            K.e(f'buffer_store_dwordx4 {v(X,4)}, v{VA}, s[20:23], {"s42" if nt else "0"} offen offset:{64*aa}')
```

```python
import sys
from mk import onefile
from k1 import build_k1
from k2 import build_k2
from k3 import build_k3
from k46 import build_k46
from k5 import build_k5
from k46n import build_k46n
from common import NAME
def full(path, o=None):
    o = o or {}
    def op(i, **kw):
        d = dict(kw); d.update(o.get(f'k{i}', {}))
        if o.get('stamp'): d.update(stamp=1, kidx=i - 1)
        return d
    parts = [build_k1(opt=op(1)), build_k2(opt=op(2)), build_k3(opt=op(3, un=2, perm='lead')),
             build_k46(4, opt=op(4, perm='lead')), build_k5(NS=4, R=6, opt=op(5)), build_k46(6, opt=op(6, perm='lead'))]
    if o.get('n32'): parts[3:] = [build_k46n(4, opt=op(4)), build_k5(NS=4, R=6, opt=op(5, om=1)), build_k46n(6, opt=op(6))]
    if o.get('mega'):
        from mega import build_mega
        up = o['mega']; mo = dict(upto=up); mo.update(o.get('m', {}))
        if o.get('stamp'): mo.update(stamp=o['stamp'], kidx=2)
        parts[2:up] = [build_mega(opt=mo)]
        return onefile(path, parts)
    for i, pt in enumerate(parts): pt[0].stsuffix = o.get('st', {}).get(i + 1, '')
    for i, pt in enumerate(parts): pt[0].align = o.get('al', {3: 'all'}).get(i + 1, o.get('align'))
    return onefile(path, parts)
if __name__ == '__main__':
    t = full('cdna_kernels/' + NAME + '.s', dict(mega=6))
    print(len(t))
```

```python
import re

def v(i, n=1): return f'v{i}' if n == 1 else f'v[{i}:{i+n-1}]'
def a(i, n=1): return f'a{i}' if n == 1 else f'a[{i}:{i+n-1}]'
def s(i, n=1): return f's{i}' if n == 1 else f's[{i}:{i+n-1}]'

_reg = re.compile(r'^(-|\|)?(abs\()?([vas])(\d+|\[(\d+):(\d+)\])\)?\|?$')
def regs_of(tok):
    tok = tok.strip()
    if tok in ('vcc',): return {('s', 106), ('s', 107)}
    if tok == 'vcc_lo': return {('s', 106)}
    if tok == 'vcc_hi': return {('s', 107)}
    if tok == 'exec': return {('s', 126), ('s', 127)}
    if tok == 'exec_lo': return {('s', 126)}
    if tok == 'exec_hi': return {('s', 127)}
    if tok == 'm0': return {('s', 124)}
    m = _reg.match(tok)
    if not m: return set()
    c = m.group(3)
    if m.group(5) is not None:
        return {(c, i) for i in range(int(m.group(5)), int(m.group(6)) + 1)}
    return {(c, int(m.group(4)))}

TRANS = ('v_exp_f32', 'v_log_f32', 'v_rcp_f32', 'v_rsq_f32', 'v_sqrt_f32', 'v_sin_f32', 'v_cos_f32')
VCC = {('s', 106), ('s', 107)}
EXEC = {('s', 126), ('s', 127)}
M0 = {('s', 124)}
DPPW = ('row_shr', 'row_shl', 'row_ror', 'quad_perm', 'row_mirror', 'row_half_mirror', 'row_bcast', 'row_newbcast', 'wave_')

class Ins:
    __slots__ = ('text', 'op', 'defs', 'uses', 'kind', 'tag', 'passes', 'A', 'B', 'C', 'dpp', 'wide', 'lds', 'pseudo', 'arg')
    def __init__(self, text, tag=None):
        self.text = text; self.tag = tag
        self.defs = set(); self.uses = set(); self.kind = 'other'; self.passes = 0
        self.A = self.B = self.C = set(); self.dpp = False; self.wide = False; self.lds = False
        self.pseudo = None; self.arg = None
        t = text.split(';')[0].strip()
        if t.startswith('@'):
            p = t[1:].split(None, 1); self.pseudo = p[0]; self.arg = p[1] if len(p) > 1 else None
            self.op = '@'; self.kind = 'pseudo'; return
        if t.endswith(':') or t.startswith('.') or not t:
            self.op = t; self.kind = 'label' if t.endswith(':') else 'dir'; return
        p = t.split(None, 1); op = p[0]; self.op = op
        rest = p[1] if len(p) > 1 else ''
        ops = []; cur = ''; d = 0
        for ch in rest:
            if ch == '[': d += 1
            if ch == ']': d -= 1
            if ch == ',' and d == 0: ops.append(cur.strip()); cur = ''
            else: cur += ch
        ops.append(cur.strip())
        mods = ''
        if ops and ' ' in ops[-1]:
            q = ops[-1].split(None, 1); ops[-1] = q[0]; mods = q[1]
        R = [regs_of(o) for o in ops]
        base = op.replace('_e32', '').replace('_e64', '').replace('_dpp', '').replace('_sdwa', '')
        if op.startswith('v_mfma'):
            self.kind = 'mfma'; self.defs = R[0]; self.A, self.B, self.C = R[1], R[2], R[3]
            self.uses = R[1] | R[2] | R[3]
            self.passes = 8 if '32x32x16' in op else 4 if ('16x16x32' in op or '16x16x16' in op) else None
            assert self.passes
        elif op.startswith('v_'):
            self.kind = 'valu'
            self.defs = set(R[0]); self.uses = set().union(*R[1:]) if len(R) > 1 else set()
            if base.startswith('v_permlane') and 'swap' in base or base == 'v_swap_b32':
                self.defs = R[0] | R[1]; self.uses = R[0] | R[1]; self.kind = 'valu'
            if base in ('v_fmac_f32', 'v_mac_f32', 'v_pk_fmac_f16', 'v_writelane_b32', 'v_dot2c_f32_bf16'): self.uses |= R[0]
            if base.startswith('v_cmpx'): self.defs |= EXEC
            if base == 'v_cndmask_b32' and len(ops) == 3: self.uses |= VCC
            if base in ('v_add_co_u32', 'v_sub_co_u32', 'v_addc_co_u32', 'v_div_scale_f32', 'v_mad_u64_u32'):
                self.defs |= R[1]; self.uses = set().union(*R[2:])
            if base == 'v_div_fmas_f32': self.uses |= VCC
            if any(w in mods for w in DPPW) or op.endswith('_dpp'):
                self.dpp = True; self.uses |= R[0]
            if 'dst_sel' in mods or 'op_sel' in mods and base.startswith('v_cvt'): self.uses |= R[0]
        elif op.startswith('ds_'):
            self.kind = 'ds'
            if op.startswith('ds_read') or op.startswith('ds_bpermute') or op.startswith('ds_permute') or op.startswith('ds_swizzle') or '_rtn_' in op:
                self.defs = R[0]; self.uses = set().union(*R[1:])
            else:
                self.uses = set().union(*R)
        elif op.startswith('buffer_') or op.startswith('global_'):
            self.kind = 'vmem'
            allm = ' ' + mods + ' '
            if ' lds ' in allm or '_lds_' in op:
                self.lds = True; self.uses = set().union(*R) | M0
            elif '_load' in op:
                self.defs = R[0]; self.uses = set().union(*R[1:])
            elif '_store' in op:
                self.uses = set().union(*R)
                self.wide = op.endswith('x4') or op.endswith('x3')
                self.C = R[0] if op.startswith('buffer_') else R[1]
            elif '_atomic' in op:
                self.uses = set().union(*R)
                if ' sc0 ' in allm: self.defs = R[0]
            elif op in ('buffer_wbl2', 'buffer_inv'):
                pass
            else: raise ValueError(text)
        elif op in ('s_memtime', 's_memrealtime') and 'stamp' in text:
            self.kind = 'salu'
        elif op.startswith('s_load') or op.startswith('s_buffer_load') or op in ('s_memtime', 's_memrealtime'):
            self.kind = 'smem'; self.defs = R[0]; self.uses = set().union(*R[1:]) if len(R) > 1 else set()
        elif op.startswith('s_'):
            self.kind = 'salu'
            if op in ('s_waitcnt', 's_nop', 's_barrier', 's_endpgm', 's_branch', 's_setprio', 's_sleep') or op.startswith('s_cbranch'):
                self.kind = 'ctl'
            elif op.startswith('s_cmp') or op.startswith('s_bitcmp'):
                self.uses = set().union(*R)
            else:
                self.defs = set(R[0]); self.uses = set().union(*R[1:]) if len(R) > 1 else set()
                if 'saveexec' in op: self.defs |= EXEC; self.uses |= EXEC
                if op in ('s_addk_i32', 's_mulk_i32'): self.uses |= R[0]
        else:
            raise ValueError('unknown op: ' + text)

def states(ins):
    if ins.kind in ('pseudo', 'label', 'dir'): return 0
    if ins.op == 's_nop': return int(ins.text.split()[1], 0) + 1
    return 1

def need_gap(p, c):
    n = 0
    vd = {r for r in p.defs if r[0] in 'va'}
    sd = {r for r in p.defs if r[0] == 's'}
    if p.kind == 'valu':
        if c.kind == 'mfma':
            if vd & c.uses: n = max(n, 2)
            if sd & EXEC: n = max(n, 4)
        if c.kind == 'valu':
            cb = c.op
            if c.dpp and vd & c.uses: n = max(n, 2)
            if c.dpp and sd & EXEC: n = max(n, 5)
            if cb.startswith('v_permlane') and vd & c.uses: n = max(n, 2)
            if cb.startswith('v_permlane') and sd & EXEC: n = max(n, 4)
            if (cb.startswith('v_readlane') or cb.startswith('v_readfirstlane')) and vd & c.uses: n = max(n, 1)
            if (cb.startswith('v_readlane') or cb.startswith('v_readfirstlane') or cb.startswith('v_writelane')) and (sd & EXEC): n = max(n, 4)
            if sd & c.uses:
                n = max(n, 4 if (cb.startswith('v_readlane') or cb.startswith('v_writelane') or cb.startswith('v_div_fmas')) else 2)
            if any(p.op.startswith(t) for t in TRANS) and vd & c.uses: n = max(n, 1)
            if ('op_sel' in p.text or 'dst_sel' in p.text) and not p.op.startswith('v_pk') and vd & (c.uses | c.defs): n = max(n, 1)
        if c.kind in ('vmem',) and sd & c.uses: n = max(n, 5)
        if c.kind in ('salu', 'smem') and sd & c.uses: n = max(n, 1)
        if c.kind == 'ctl' and c.op.startswith('s_cbranch_vcc') and sd & VCC: n = max(n, 1)
    if p.kind == 'salu':
        if c.kind == 'vmem' and c.lds and sd & M0: n = max(n, 1)
    if p.kind == 'vmem' and p.wide:
        if p.C & c.defs: n = max(n, 2 if c.kind in ('valu', 'mfma') else 1)
    if p.kind == 'mfma':
        big = p.passes == 8
        if c.kind == 'mfma':
            if p.defs & (c.A | c.B): n = max(n, 12 if big else 8)
            if p.defs & c.C:
                if not (p.defs == c.C and p.op == c.op): n = max(n, 10 if big else 6)
            elif p.defs & c.defs and not (p.defs == c.defs and p.passes == c.passes):
                n = max(n, 10 if big else 6)
        elif c.kind in ('valu', 'vmem', 'ds'):
            if p.defs & (c.uses | c.defs): n = max(n, 12 if big else 8)
            if c.kind == 'valu' and p.C & c.defs: n = max(n, 7 if big else 3)
            if c.kind in ('vmem', 'ds') and p.C & c.defs: n = max(n, 7 if big else 3)
    return n

class Kernel:
    def __init__(self, name):
        self.name = name; self.ins = []
    _uid = 0
    def uid(self): self._uid += 1; return self._uid
    def e(self, text, tag=None):
        if isinstance(text, (list, tuple)) and not isinstance(text, str):
            for t in text:
                if isinstance(t, tuple): self.ins.append(Ins(t[0], t[1]))
                else: self.ins.append(Ins(t))
            return
        for line in text.split('\n'):
            line = line.strip()
            if line: self.ins.append(Ins(line, tag))
    def insert_waits(self):
        out = []
        vm = []
        lg = []
        saved = {}
        def emit_wait(nv, nl):
            parts = []
            if nv is not None and nv < len(vm):
                assert nv <= 63, 'vmcnt overflow %d' % nv
                parts.append(f'vmcnt({nv})'); del vm[:len(vm) - nv]
            if nl is not None and nl < len(lg):
                if any(x[2] for x in lg): nl = 0
                if nl > 15: nl = 15
                if nl < len(lg):
                    parts.append(f'lgkmcnt({nl})'); del lg[:len(lg) - nl]
            if parts: out.append(Ins('s_waitcnt ' + ' '.join(parts)))
        for I in self.ins:
            if I.kind == 'pseudo':
                if I.pseudo == 'waitvm':
                    if I.arg in (None, 'all'): emit_wait(0, None)
                    else:
                        tags = I.arg.split()
                        idx = [k for k, x in enumerate(vm) if x[1] in tags]
                        if idx: emit_wait(len(vm) - 1 - idx[-1], None)
                elif I.pseudo == 'waitlg':
                    if I.arg in (None, 'all'): emit_wait(None, 0)
                    else:
                        tags = I.arg.split()
                        idx = [k for k, x in enumerate(lg) if x[1] in tags]
                        if idx: emit_wait(None, len(lg) - 1 - idx[-1])
                elif I.pseudo == 'wait2':
                    tv, tl = I.arg.split()
                    iv = [k for k, x in enumerate(vm) if x[1] == tv]; il = [k for k, x in enumerate(lg) if x[1] == tl]
                    emit_wait(len(vm) - 1 - iv[-1] if iv else None, len(lg) - 1 - il[-1] if il else None)
                elif I.pseudo == 'waitall': emit_wait(0, 0)
                elif I.pseudo == 'save': saved[I.arg] = (list(vm), list(lg))
                elif I.pseudo == 'restore':
                    vm[:] = saved[I.arg][0]; lg[:] = saved[I.arg][1]
                elif I.pseudo == 'check':
                    ca = I.arg.split(); sv, sl = saved[ca[0]]
                    if len(ca) > 1:
                        assert not any(y[0] for y in vm[len(vm) - 0:]) ; sv = list(vm)
                    def norm(x): return [(frozenset(y[0]), y[1]) for y in x]
                    nv, nl = norm(vm), norm(lg); rv, rl = norm(sv), norm(sl)
                    assert (nv == rv[len(rv) - len(nv):] if nv else True) and len(nv) <= len(rv), f'vm state mismatch at {I.arg}\n{nv}\n{rv}'
                    assert (nl == rl[len(rl) - len(nl):] if nl else True) and len(nl) <= len(rl), f'lgkm state mismatch at {I.arg}\n{nl}\n{rl}'
                elif I.pseudo == 'clear': vm.clear(); lg.clear()
                elif I.pseudo == 'seedvm':
                    vm[:] = [(set(), x.split(':')[0]) for x in I.arg.split() for _ in range(int(x.split(':')[1]))]
                elif I.pseudo in ('loophead', 'loopend', 'hzreset', 'alon', 'aloff'): out.append(I)
                else: raise ValueError(I.text)
                continue
            touch = I.uses | I.defs
            nv = nl = None
            if touch:
                for k in range(len(vm) - 1, -1, -1):
                    if vm[k][0] & touch: nv = len(vm) - 1 - k; break
                for k in range(len(lg) - 1, -1, -1):
                    if lg[k][0] & touch: nl = len(lg) - 1 - k; break
            if I.op == 's_waitcnt':
                m = re.search(r'vmcnt\((\d+)\)', I.text)
                if m and int(m.group(1)) < len(vm): del vm[:len(vm) - int(m.group(1))]
                m = re.search(r'lgkmcnt\((\d+)\)', I.text)
                if m and int(m.group(1)) < len(lg):
                    n = int(m.group(1))
                    if not any(x[2] for x in lg) or n == 0: del lg[:len(lg) - n]
            emit_wait(nv, nl)
            if I.kind == 'vmem' and len(vm) >= 63: emit_wait(62, None)
            out.append(I)
            if I.kind == 'vmem': vm.append((set(I.defs), I.tag))
            elif I.kind == 'ds': lg.append((set(I.defs), I.tag, False))
            elif I.kind == 'smem': lg.append((set(I.defs), I.tag, True))
        self.ins = out
    def insert_nops(self):
        out = []; heads = {}
        W = 14
        def gap_for(hist, I):
            need = 0; d = 0
            for P in reversed(hist):
                if P.pseudo == 'hzreset': break
                if d >= W: break
                if P.kind not in ('pseudo', 'label', 'dir'):
                    g = need_gap(P, I)
                    if g - d > need: need = g - d
                d += states(P)
            return need
        self.nnops = 0
        for I in self.ins:
            if I.pseudo == 'loophead': heads[I.arg] = len(out); out.append(I); continue
            if I.pseudo == 'loopend':
                h = heads[I.arg]; hist = list(out); d = 0; k = h
                while d < W and k < len(out):
                    J = out[k]
                    if J.kind not in ('pseudo', 'label', 'dir'):
                        g = gap_for(hist, J)
                        assert g <= 0, f'back-edge hazard before {J.text} needs {g}'
                    hist.append(J); d += states(J); k += 1
                out.append(I); continue
            if I.kind not in ('pseudo', 'label', 'dir'):
                g = gap_for(out, I)
                if g > 0:
                    out.append(Ins(f's_nop {g-1}')); self.nnops += 1
            out.append(I)
        self.ins = out
    align = None
    WIDEN = ('v_exp_f32', 'v_rcp_f32', 'v_rsq_f32', 'v_sqrt_f32', 'v_mov_b32', 'v_add_f32', 'v_mul_f32', 'v_sub_f32', 'v_max_f32', 'v_and_b32',
             'v_lshlrev_b32', 'v_lshrrev_b32', 'v_add_u32', 'v_xor_b32', 'v_or_b32', 'v_permlane32_swap_b32', 'v_permlane16_swap_b32', 'v_min_u32', 'v_mul_u32_u24', 'v_subrev_u32', 'v_sub_u32')
    def sizes(self):
        import subprocess, tempfile, os
        real = [I for I in self.ins if I.kind not in ('pseudo', 'dir')]
        src = '.amdgcn_target "amdgcn-amd-amdhsa--gfx950"\n.text\n' + '\n'.join(I.text for I in real) + '\n'
        with tempfile.TemporaryDirectory() as d:
            open(d + '/a.s', 'w').write(src)
            subprocess.check_call(['clang', '-target', 'amdgcn-amd-amdhsa', '-mcpu=gfx950', '-c', d + '/a.s', '-o', d + '/a.o'])
            o = subprocess.check_output(['llvm-objdump', '-d', d + '/a.o']).decode()
        sz = [4 * len(m.group(1).split()) for m in re.finditer(r'// [0-9A-F]+: ((?:[0-9A-F]{8} ?)+)', o)]
        ins = [I for I in real if I.kind != 'label']
        assert len(sz) == len(ins), (len(sz), len(ins))
        return {id(I): n for I, n in zip(ins, sz)}
    def align8(self, mode):
        sz = self.sizes(); out = []; ph = 0; run = []
        self.npad = self.nwide = 0
        on = not any(I.pseudo == 'alon' for I in self.ins)
        for I in self.ins:
            if I.pseudo in ('alon', 'aloff'): on = I.pseudo == 'alon'
            if I.kind == 'dir' and I.text.startswith('.p2align'): ph = 0; run = []
            if I.kind in ('pseudo', 'dir', 'label'): out.append(I); continue
            n = sz[id(I)]
            if n == 4: run.append(len(out)); out.append(I); ph ^= 4; continue
            if ph and on:
                w = [k for k in run if out[k].op in self.WIDEN]
                sp = [k for k in run if out[k].op == 's_waitcnt' and 'vmcnt' in out[k].text and 'lgkmcnt' in out[k].text]
                if w:
                    J = out[w[0]]; J.text = J.text.replace(J.op, J.op + '_e64', 1); ph = 0; self.nwide += 1
                elif mode == 'all':
                    if sp:
                        a_, b_ = out[sp[0]].text.split()[1:3]
                        out[sp[0]] = Ins('s_waitcnt ' + a_); out.insert(sp[0] + 1, Ins('s_waitcnt ' + b_))
                    else: out.append(Ins('s_nop 0'))
                    ph = 0; self.npad += 1
            out.append(I); run = []
        self.ins = out
    stsuffix = ''
    def text(self):
        if self.stsuffix:
            for I in self.ins:
                if I.op.startswith('buffer_store') and 's[60:63]' not in I.text: I.text += self.stsuffix
        self.insert_waits(); self.insert_nops()
        if self.align: self.align8(self.align)
        L = []
        for I in self.ins:
            if I.kind == 'pseudo': continue
            L.append(I.text if I.kind in ('label', 'dir') else ' ' + I.text)
        return '\n'.join(L)
    def maxregs(self):
        mv = ma = -1
        for I in self.ins:
            for c, i in I.defs | I.uses:
                if c == 'v': mv = max(mv, i)
                if c == 'a': ma = max(ma, i)
        return mv + 1, ma + 1

def interleave(main, fill, start=0, per=1, every=1):
    fill = list(fill); k = start
    while fill:
        if k >= len(main):
            for x in fill: main[-1].extend(x if isinstance(x, list) else [x])
            break
        for _ in range(per):
            if fill:
                x = fill.pop(0)
                if isinstance(x, list): main[k].extend(x)
                else: main[k].append(x)
        k += every
    return main

def flatten(slots):
    o = []
    for sl in slots: o.extend(sl)
    return o

def wrap_file(header, kernels, launches):
    L = [header.rstrip('\n')]
    for (n, g, b, l) in launches:
        L.append(f'; @launch kernel={n} grid=({g},1,1) block=({b},1,1) lds={l}')
    L.append('.amdgcn_target "amdgcn-amd-amdhsa--gfx950"')
    L.append('.text')
    desc = []
    for K in kernels:
        t = K.text()
        nv, na = K.maxregs()
        acc = max(4, (nv + 3) // 4 * 4)
        tot = acc + na if na else max(nv, 1)
        L += [f'.globl {K.name}', '.p2align 8', f'.type {K.name},@function', f'{K.name}:', t]
        desc += ['.p2align 6', f'.amdhsa_kernel {K.name}', f'  .amdhsa_next_free_vgpr {tot}', '  .amdhsa_next_free_sgpr 102',
                 f'  .amdhsa_accum_offset {acc}', '  .amdhsa_group_segment_fixed_size 0', '  .amdhsa_kernarg_size 112',
                 '  .amdhsa_user_sgpr_count 2', '  .amdhsa_user_sgpr_kernarg_segment_ptr 1', '  .amdhsa_system_sgpr_workgroup_id_x 1',
                 '.end_amdhsa_kernel']
    L.append('.section .rodata,"a"')
    L += desc
    return '\n'.join(L) + '\n'
```

```python
from asmlib import *
import os
NAME = 'adaLN_cond__grouped_kv_mqa__glu_gated_glu__prompt'
KA = dict(x=0, wq=8, wk=16, wv=24, wo=32, wg=48, wu=56, wd=64, c=72, wmod=80, out=88, dbg=96, ws=104)
WS_MOD   = 0x0
WS_MODB  = 0x8000
WS_UTF   = 0x100000
WS_STATS = 0x200000
WS_KV    = 0x300000
WS_H1    = 0x400000
WS_O     = 0x800000
WS_X1    = 0xC00000
WS_X1S   = 0x1000000
WS_HH    = 0x1400000
LOG2E = 1.4426950408889634
import struct
def f2h(x): return '0x%08x' % struct.unpack('<I', struct.pack('<f', x))[0]

def srd(K, d, base, off, size):
    if off:
        K.e(f's_add_u32 s{d}, s{base}, {hex(off)}')
        K.e(f's_addc_u32 s{d+1}, s{base+1}, 0')
    else:
        K.e(f's_mov_b32 s{d}, s{base}')
        K.e(f's_mov_b32 s{d+1}, s{base+1}')
    K.e(f's_mov_b32 s{d+2}, {hex(size)}')
    K.e(f's_mov_b32 s{d+3}, 0x00020000')

def guard(K, nwg):
    K.e(f's_cmp_ge_u32 s2, {nwg}')
    K.e(f's_cbranch_scc1 {K.name}_end')

def finish(K):
    K.e(f'{K.name}_end:')
    K.e('s_endpgm')

HEADER = open('cdna_kernels/' + NAME + '.s.ref').read().split('; Override launch')[0]

WS_STAMP = 0x8000000
def stamp(K, i):
    K.e(f's_memtime s[{64+4*i}:{65+4*i}]')
    K.e(f's_memrealtime s[{66+4*i}:{67+4*i}]')
def dump_stamps(K, n, wsbase, kidx=0):
    K.e('@waitall')
    srd(K, 60, wsbase, WS_STAMP + kidx * 0x10000, 0x10000)
    K.e('s_lshl_b32 s59, s2, 2\ns_add_u32 s59, s59, s3\ns_lshl_b32 s59, s59, 6')
    K.e('v_mov_b32 v1, 0')
    for i in range(n):
        K.e(f'v_mov_b32 v2, s{64+4*i}\nv_mov_b32 v3, s{66+4*i}')
        K.e(f'buffer_store_dwordx2 v[2:3], v1, s[60:63], s59 offen offset:{8*i}')
        K.e('s_waitcnt vmcnt(0)')

def perm_table(K, vT, NST, mode, t0, t1, wstep=262144, bstep=4096, vl=0, sj=11, sa=18, sb=19, emit=True):
    L = [f's_lshr_b32 s{sa}, s{sj}, 2', f's_and_b32 s{sb}, s{sj}, 3']
    if mode == 'lead':
        L += [f's_add_u32 s{sa}, s{sa}, s{sb}', f's_and_b32 s{sa}, s{sa}, 3',
              f'v_subrev_u32 v{t0}, s{sa}, v{vl}', f'v_and_b32 v{t0}, 3, v{t0}',
              f'v_sub_u32 v{t1}, v{vl}, v{t0}',
              f'v_cmp_eq_u32 vcc, 0, v{t0}', f'v_cndmask_b32 v{t0}, -1, 3, vcc',
              f'v_cmp_gt_u32 vcc, {NST - 3}, v{t1}', f'v_cndmask_b32 v{t0}, 0, v{t0}, vcc', f'v_add_u32 v{t0}, v{vl}, v{t0}']
    elif mode == 'rot':
        L += [f's_lshl_b32 s{sb}, s{sb}, 1', f's_add_u32 s{sa}, s{sa}, s{sb}', f'v_add_u32 v{t0}, s{sa}, v{vl}', f'v_and_b32 v{t0}, {NST - 1}, v{t0}']
    elif mode == 'rotb':
        L += [f'v_add_u32 v{t0}, s{sa}, v{vl}', f'v_and_b32 v{t0}, {NST - 1}, v{t0}']
    else: L += [f'v_mov_b32 v{t0}, v{vl}']
    L += [f'v_mul_u32_u24 v{vT}, {wstep}, v{t0}', f'v_mul_u32_u24 v{vT+1}, {bstep}, v{t0}']
    if emit: K.e(L)
    return L

WS_FLAG = 0x20000
FSH = int(os.environ.get('FSH', 7)); FS = 1 << FSH
F_O = 0
F_X = 512 * FS
F_H = 1024 * FS
F_U = 1280 * FS
F_SIZE = 1536 * FS
F_KV = 1536 * FS
F_M = 1792 * FS
F_GR = 2048 * FS
F_S1 = F_GR + 0x8000
F_NONCE = F_S1 + 0x8000
F_SIZE1 = F_NONCE + 128
TAG = {'val': '1'}
class Stamps:
    def __init__(self, K, on, kidx, skip=()): self.K = K; self.on = on; self.kidx = kidx; self.n = 0; self.names = []; self.skip = skip; self.only = None
    def __call__(self, name=''):
        if not self.on or name in self.skip or (self.only and name not in self.only): return
        if self.on == 'cnt' and name in ('qproj', 'e5', 'k6'): return
        self.K.e(f'{"s_memtime" if self.on == "cyc" else "s_memrealtime"} s[{66+2*self.n}:{67+2*self.n}]'); self.K.ins[-1].kind = 'salu'; self.n += 1
        self.names.append(name)
        assert self.n <= 14
    def dump(self, wsbase):
        if not self.on: return
        K = self.K
        K.e('s_waitcnt vmcnt(0) lgkmcnt(0)')
        srd(K, 60, wsbase, WS_STAMP + self.kidx * 0x10000, 0x10000)
        K.e('s_lshl_b32 s59, s2, 2\ns_add_u32 s59, s59, s3\ns_lshl_b32 s59, s59, 6\nv_mov_b32 v1, 0')
        for i in range(self.n):
            K.e(f'v_mov_b32 v2, s{66+2*i}\nbuffer_store_dword v2, v1, s[60:63], s59 offen offset:{4*i}\ns_waitcnt vmcnt(0)')
        K.e(f'v_mov_b32 v2, 0x4d454741\nbuffer_store_dword v2, v1, s[60:63], s59 offen offset:60\ns_waitcnt vmcnt(0)')
        K.e('; STAMPS ' + ' '.join(self.names))
def publish(K, sF, va, vt, nl=1):
    l = f'{K.name}_pub{K.uid()}'
    K.e(f's_cmp_lg_u32 s3, 0\ns_cbranch_scc1 {l}')
    K.e(f'v_mov_b32 v{vt}, {TAG["val"]}\ns_mov_b64 exec, {(1 << nl) - 1}\nbuffer_store_dword v{vt}, v{va}, {s(sF,4)}, 0 offen sc1\ns_mov_b64 exec, -1')
    K.ins[-2].kind = 'other'
    K.e(f'{l}:')
def poll(K, sF, va, vt, scnt, sleep=0, one=0, ST=None):
    l = f'{K.name}_poll{K.uid()}'
    K.e(f's_mov_b32 s{scnt}, 0x8000')
    if one: K.e(f's_cmp_lg_u32 s3, {one - 1}\ns_cbranch_scc1 {l}x')
    K.e(f'{l}:')
    K.e(f'buffer_load_dword v{vt}, v{va}, {s(sF,4)}, 0 offen sc1\ns_sub_u32 s{scnt}, s{scnt}, 1')
    if sleep: K.e(f's_sleep {sleep}')
    K.e('s_waitcnt vmcnt(0)')
    K.e(f'v_cmp_ne_u32 vcc, {TAG["val"]}, v{vt}\ns_cselect_b64 vcc, 0, vcc\ns_cbranch_vccnz {l}')
    if one: K.e(f'{l}x:\ns_barrier')
    if ST and ST.on == 'cnt': K.e(f's_sub_u32 s{66+2*ST.n}, 0x8000, s{scnt}'); ST.n += 1; ST.names.append('#')

def code_touch(K, l0, l1, vd, back=False, va=2):
    l = f'{K.name}_pc{K.uid()}'
    K.e(f's_getpc_b64 s[16:17]\n{l}:')
    K.e(f's_sub_u32 s16, s16, {l}-{l0}\ns_subb_u32 s17, s17, 0' if back else f's_add_u32 s16, s16, {l0}-{l}\ns_addc_u32 s17, s17, 0')
    K.e(f's_lshr_b32 s18, s2, 3\ns_lshl_b32 s18, s18, 2\ns_add_u32 s18, s18, s3\ns_lshl_b32 s18, s18, 7')
    K.e(f'v_lshlrev_b32 v{va}, 14, v0\nv_add_u32 v{va}, s18, v{va}\nv_min_u32 v{va}, {l1}-{l0}-4, v{va}')
    K.e(f'v_mov_b32 v{va+1}, s17\nv_add_co_u32 v{va}, vcc, s16, v{va}\nv_addc_co_u32 v{va+1}, vcc, 0, v{va+1}, vcc')
    K.e(f'global_load_dword v{vd}, v[{va}:{va+1}], off')

class Rec:
    def __init__(self, K): self.K = K; self.name = K.name; self.g = []; self.glue = False; self.first = True
    def uid(self): return self.K.uid()
    def e(self, x, tag=None):
        L = x.split('\n') if isinstance(x, str) else list(x)
        if tag: L = [(y, tag) for y in L]
        for y in L:
            t = y[0] if isinstance(y, tuple) else y
            join = self.g and ((self.glue and not self.first) or t.startswith(('s_addc', 's_cselect', 's_cbranch')) or self.pend)
            if join: self.g[-1].append(y)
            else: self.g.append([y])
            self.pend = t.startswith('@') or t.startswith('s_cmp') or (t.startswith('s_mov') and 'exec' in t and '-1' not in t) or (self.pend and self.masked and 'exec, -1' not in t)
            if t.startswith('s_mov') and 'exec' in t: self.masked = '-1' not in t
            self.first = False
    pend = False; masked = False
    def atom(self, f):
        self.glue = True; self.first = True; f(); self.glue = False
    def take(self):
        g = self.g; self.g = []; return g
```

```python
from k3 import *
M16 = 'v_mfma_f32_16x16x16_bf16'
BIG = 0x40000000
LKV = 131072
STC = LKV + 16384; STS = STC + 2048 + 128
UTX = STC + 4608
SH = STC + 5120
SC = LKV + 24576
HS = 24576
LW = HS; RED = 3 * HS
def slot(h): return (h + 4) % 6 * HS
def agblk(i): return LKV + 4096 * i
VG, VXA, VF, VPOLL, VS = 40, 41, 42, 43, 44
VT, VTU, VSTG, VM0, VD = 156, 160, 161, 162, 164
VXR = 154; VHI = 144
VGRW, VS1W, VKVF, VKP, VS1R, VKVW, VA, VB_ = 208, 209, 210, 211, 251, 252, 253, 254
QST = 188
AS = 224
DPPE = 'quad_perm:[0,0,2,2] row_mask:0xf bank_mask:0xf'; DPPO = 'quad_perm:[1,1,3,3] row_mask:0xf bank_mask:0xf'
def qacc(mt, nt): return 4 + 4 * (2 * mt + nt)

def reduce_rows(K, A, n):
    m = n // 4
    for j in range(2 * m): K.e(f'v_permlane32_swap_b32 v{A+j}, v{A+2*m+j}')
    for j in range(2 * m): K.e(f'v_add_f32 v{A+j}, v{A+j}, v{A+2*m+j}')
    for j in range(m): K.e(f'v_permlane16_swap_b32 v{A+j}, v{A+m+j}')
    for j in range(m): K.e(f'v_add_f32 v{A+j}, v{A+j}, v{A+m+j}')
    for r in (8, 4, 2, 1):
        for j in range(m): K.e(f'v_add_f32_dpp v{A+j}, v{A+j}, v{A+j} row_ror:{r} row_mask:0xf bank_mask:0xf')
def round_pair(K, d, sadd):
    K.e(f'v_cvt_pk_bf16_f32 v{d+2}, v{d}, v{d+1}')
    K.e(unpack(d, d + 2))
    K.e(f'v_add_f32 v{d}, s{sadd}, v{d}\nv_add_f32 v{d+1}, s{sadd}, v{d+1}\nv_cvt_pk_bf16_f32 v{d+2}, v{d}, v{d+1}')

def spin(K, loads, tags, first_done, n0=0):
    l = f'{K.name}_spin{K.uid()}'
    def check(n=0):
        if n is not None: K.e(f's_waitcnt vmcnt({n})')
        K.e(f'v_cmp_ne_u32 vcc, s59, v{tags[0]}')
        for t in tags[1:]: K.e(f'v_cmp_ne_u32 s[18:19], s59, v{t}\ns_or_b64 vcc, vcc, s[18:19]')
    K.e('s_mov_b32 s16, 0x8000')
    if first_done: check(n0); K.e(f's_cbranch_vccz {l}x\n@save {l}')
    K.e(f'{l}:')
    K.e(loads); check()
    K.e(f's_sub_u32 s16, s16, 1\ns_cselect_b64 vcc, 0, vcc\ns_cbranch_vccnz {l}\n{l}x:')
    if first_done: K.e(f'@restore {l}')

def front(K, ST, opt, setup, ringq):
    name = K.name; GS = opt.get('GS', 32); X = opt.get('X', 23)
    K.e(f's_load_dwordx2 s[36:37], s[0:1], {KA["wmod"]}\ns_load_dwordx2 s[48:49], s[0:1], {KA["c"]}\ns_load_dwordx4 s[40:43], s[0:1], {KA["wk"]}')
    tile_ids(K)
    K.e('s_lshl_b32 s16, s10, 5\ns_add_u32 s16, s16, s11')
    K.e(f'v_mul_u32_u24 v{VG}, 49152, v0\nv_lshlrev_b32 v1, 3, v0\ns_lshl_b32 s17, s3, 9')
    K.e(f's_mul_i32 s19, s3, {64*49152}\ns_lshl_b32 s18, s16, 4\ns_add_u32 s18, s18, s19')
    GX = opt.get('gx', 1)
    if GX: K.e('s_and_b32 s19, s11, 3')
    K.e(f's_mov_b32 s38, {1024*12288}\ns_mov_b32 s39, 0x00020000\ns_mov_b32 s50, 2048\ns_mov_b32 s51, 0x00020000')
    K.e('@waitlg all')
    ST('a')
    W = 8
    for r in range(4):
        if GX: K.e(f's_xor_b32 s6, s19, {r}\ns_mul_i32 s6, s6, 12288\ns_add_u32 s6, s6, s18')
        K.e(f'buffer_load_dwordx4 {v(W+4*r,4)}, v{VG}, s[36:39], s{6 if GX else 18} offen' + opt.get('gfl', ''))
        if r == 0: K.e('buffer_load_dwordx2 v[4:5], v1, s[48:51], s17 offen')
        if r < 3 and not GX: K.e('s_add_u32 s18, s18, 12288')
    ST('b')
    srd(K, 24, 64, 0, 2048 * 2048)
    srd(K, 20, 4, 0, 1024 * 2048)
    def touches(which):
        K.e('s_lshl_b32 s17, s11, 2\ns_add_u32 s17, s17, s3')
        for c in which:
            if c == 'c': K.e('s_mov_b32 s19, s16'); code_touch(K, name + '_c0', name + '_end', 239, True); K.e('s_mov_b32 s16, s19\ns_lshl_b32 s17, s11, 2\ns_add_u32 s17, s17, s3')
            if c == 'k':
                K.e('s_cmp_ge_u32 s17, 64\ns_cselect_b32 s28, s42, s40\ns_cselect_b32 s29, s43, s41\ns_mov_b32 s30, 65536\ns_mov_b32 s31, 0x00020000')
                K.e('s_and_b32 s18, s17, 63\ns_lshl_b32 s18, s18, 10\nv_lshlrev_b32 v2, 6, v0\ns_mov_b64 exec, 0xffff\nbuffer_load_dword v238, v2, s[28:31], s18 offen\ns_mov_b64 exec, -1')
            if c == 'x':
                K.e('s_lshr_b32 s18, s10, 1\ns_lshl_b32 s18, s18, 7\ns_add_u32 s18, s18, s17\ns_lshl_b32 s18, s18, 13\nv_lshlrev_b32 v2, 7, v0\nbuffer_load_dword v212, v2, s[24:27], s18 offen')
            if c == 'X': K.e('buffer_load_dword v213, v2, s[24:27], s18 offen offset:64')
            if c == 'q':
                K.e('s_and_b32 s18, s10, 1\ns_lshl_b32 s18, s18, 10\ns_lshl_b32 s19, s17, 14\ns_add_u32 s18, s18, s19')
                K.e('v_and_b32 v2, 7, v0\nv_lshlrev_b32 v2, 7, v2\nv_lshrrev_b32 v3, 3, v0\nv_lshl_add_u32 v2, v3, 11, v2\nbuffer_load_dword v214, v2, s[20:23], s18 offen')
    touches(opt.get('tch', 'c' if opt.get('ct') else ''))
    K.e(f's_load_dword s59, s[8:9], {WS_FLAG + F_NONCE}')
    K.e('s_bitcmp1_b32 s13, 0\ns_cselect_b32 s40, s42, s40\ns_cselect_b32 s41, s43, s41\ns_mov_b32 s42, 65536\ns_mov_b32 s43, 0x00020000')
    K.e(f'v_lshlrev_b32 v{VA}, 4, v0\nv_and_b32 v1, 15, v0\nv_lshlrev_b32 v1, 11, v1\nv_lshrrev_b32 v3, 4, v0\nv_lshl_add_u32 v{VXA}, v3, 4, v1')
    K.e('s_lshr_b32 s17, s13, 1\ns_lshl_b32 s18, s12, 3\ns_add_u32 s17, s17, s18')
    K.e('s_lshl_b32 s18, s17, 15\ns_lshl_b32 s19, s3, 9\ns_add_u32 s57, s18, s19')
    K.e('s_lshl_b32 s50, s3, 11')
    XK = 48; WK = 80
    Qv = [([f's_lshl_b32 s19, s3, 14', f's_add_u32 s19, s19, {1024*i}', f's_add_u32 m0, s19, {LW}'] if i % 4 == 0 else []) +
          [(f'buffer_load_dwordx4 v{VA}, s[40:43], s19 offen offset:{1024*(i%4)} lds', 'KVW')] for i in range(16)]
    xk = [[f'buffer_load_dwordx4 {v(XK+4*i,4)}, v{VXA}, s[24:27], s57 offen offset:{64*i}'] for i in range(8)]
    Qv = xk + Qv if opt.get('xfirst') else Qv + xk
    def hdma(h):
        px = lambda h: [f's_lshl1_add_u32 m0, s50, {slot(h) + 8192}'] + (['s_add_u32 s48, s48, 128', 's_add_u32 s49, s49, 128'] if h else ['s_lshl_b32 s48, s15, 15', f's_add_u32 s49, s48, {32768 - 2048}'])
        L = [[(f'buffer_load_dwordx4 v{VD+2+(i&1)}, s[24:27], s{48+(i>>1)} offen offset:{1024*i} lds', f'X{h}')] for i in range(4)]
        L += [[(f'buffer_load_dwordx4 v{VD+i}, s[20:23], s42 offen offset:{1024*i} lds', f'W{h}')] for i in range(2)]
        if h == 0: L[0] = px(0) + L[0]
        L[3] += [f's_add_u32 m0, s50, {slot(h)}', f's_mov_b32 s42, {h << 17}']
        if h < 15: L[5] += px(h + 1)
        return L
    def rd(r, o): return (r, o) if o < 3 * HS else (VHI + r - VXR, o - 3 * HS)
    def xreg(t): return 8 * (t % 2)
    def xreads(t):
        r, o = rd(VXR + t % 2, slot(t // 2))
        return [f'ds_read_b128 {a(xreg(t)+4*nt,4)}, v{r} offset:{o + 2048*nt}' for nt in range(2)]
    for h in range(5): Qv += hdma(h)
    cnt = [0]
    def issue(n):
        while cnt[0] < n: K.e(Qv.pop(0)); cnt[0] += 1
    n0 = opt.get('n0', 0); n1 = opt.get('n1', 8); n2 = opt.get('n2', 24); n3 = opt.get('n3', 42); n4 = opt.get('n4', 54); n5 = opt.get('n5', 54)
    assert all((n % 4 if n < 24 else 0) == 0 for n in (n0, n1, n2, n3, n4, n5)) and n0 <= 24 and n0 <= n1 <= n2 <= n3 <= n4 <= n5 <= 54 and 24 <= n3 <= 42
    issue(n0)
    ST('c')
    K.e(f's_lshl_b32 s18, s3, 6\nv_add_u32 v3, s18, v0')
    K.e(f'v_mul_u32_u24 v{VPOLL}, {GS}, v3\nv_add_u32 v{VPOLL}, {F_GR}, v{VPOLL}')
    K.e(f's_mul_i32 s18, s16, {GS}\ns_add_u32 s18, s18, {F_GR}\nv_lshl_add_u32 v1, v0, 3, s18\nv_mov_b32 v2, {BIG}\nv_cmp_gt_u32 vcc, 4, v3\nv_cndmask_b32 v{VGRW}, v2, v1, vcc')
    K.e(f's_cmp_ge_u32 s3, 2\ns_cselect_b32 s18, 0, {STS - STC + 2048}\ns_add_u32 s18, s18, {STC - 2048}\nv_lshl_add_u32 v{VSTG}, v3, 4, s18')
    K.e(f'v_lshlrev_b32 v{VKP}, 3, v3\nv_add_u32 v{VKP}, {F_KV}, v{VKP}')
    K.e(f's_lshl_b32 s18, s16, 3\ns_lshl_b32 s19, s3, 2\ns_add_u32 s18, s18, s19\ns_add_u32 s18, s18, {F_KV}\nv_mov_b32 v1, s18')
    K.e(f'v_and_b32 v{VB_}, 0xbf, v3\nv_cmp_eq_u32 vcc, 0, v{VB_}\nv_cndmask_b32 v{VKVF}, v2, v1, vcc')
    K.e(f's_lshl_b32 s18, s17, 8\ns_add_u32 s18, s18, {F_S1}\ns_and_b32 s19, s13, 1\ns_cselect_b32 s18, {BIG}, s18')
    K.e(f'v_lshl_add_u32 v1, v0, 4, s18\nv_cmp_gt_u32 vcc, 16, v3\nv_cndmask_b32 v{VS1W}, v2, v1, vcc')
    K.e(f's_lshl_b32 s18, s15, 8\ns_add_u32 s18, s18, {F_S1}\nv_and_b32 v1, 15, v0\nv_lshl_add_u32 v{VS1R}, v1, 4, s18')
    K.e('s_and_b32 s18, s3, 1\ns_and_b32 s19, s17, 1\ns_lshr_b32 s17, s17, 1\ns_lshl_b32 s17, s17, 12\ns_bitcmp1_b32 s13, 0')
    K.e('s_cselect_b32 s6, s19, s18\ns_cselect_b32 s7, s18, s19\ns_cselect_b32 s18, 2048, 0\ns_cselect_b32 s19, 4, 5\ns_cselect_b32 s56, 5, 4')
    K.e('s_add_u32 s17, s17, s18\ns_lshl_b32 s6, s6, 10\ns_lshl_b32 s7, s7, 8\ns_add_u32 s17, s17, s6\ns_add_u32 s17, s17, s7')
    K.e(f's_cmp_ge_u32 s3, 2\ns_cselect_b32 s17, {BIG}, s17')
    K.e(f'v_lshl_add_u32 v1, v1, 4, s17\nv_bfe_u32 v2, v0, s19, 1\nv_lshl_add_u32 v1, v2, 9, v1\nv_bfe_u32 v2, v0, s56, 1\nv_lshl_add_u32 v{VKVW}, v2, 3, v1')
    K.e(f's_cmp_ge_u32 s16, 128\ns_cselect_b32 s58, 1.0, 0')
    for i in range(2):
        K.e(f'v_lshrrev_b32 v1, 4, v0\nv_xor_b32 v1, {4*i}, v1\nv_xor_b32 v1, v1, v0\nv_and_b32 v1, 7, v1\nv_lshlrev_b32 v1, 4, v1')
        K.e(f'v_lshrrev_b32 v2, 3, v0\nv_lshl_add_u32 v1, v2, 11, v1\nv_add_u32 v{VD+2+i}, {i * (8 * 2048 - 1024)}, v1')
    K.e(f'v_and_b32 v1, 15, v0\nv_lshrrev_b32 v2, 1, v1\nv_lshrrev_b32 v{VXR}, 4, v0\nv_xor_b32 v2, v2, v{VXR}\nv_lshlrev_b32 v2, 4, v2\nv_lshl_add_u32 v1, v1, 7, v2')
    K.e(f's_lshl_b32 s18, s3, 12\ns_add_u32 s18, s18, 8192\nv_add_u32 v{VXR}, s18, v1\nv_xor_b32 v{VXR+1}, 64, v{VXR}')
    K.e('s_lshl_b32 s18, s3, 15\ns_add_u32 s18, s18, s14')
    for i in range(2):
        K.e('v_bfe_u32 v1, v0, 4, 1')
        if i & 1: K.e('v_or_b32 v1, 2, v1')
        K.e('v_lshlrev_b32 v1, 1, v1\nv_xor_b32 v1, v1, v0\nv_and_b32 v1, 7, v1\nv_lshlrev_b32 v1, 4, v1')
        K.e(f'v_lshrrev_b32 v2, 3, v0\nv_lshl_add_u32 v1, v2, 11, v1\nv_add_u32 v1, s18, v1\nv_add_u32 v{VD+i}, {i * (8 * 2048 - 1024)}, v1')
    K.e('v_lshrrev_b32 v1, 4, v0\nv_lshlrev_b32 v1, 3, v1\nv_bfe_u32 v2, v0, 2, 2\nv_add_u32 v1, v1, v2')
    K.e(f'v_and_b32 v2, 3, v0\nv_lshlrev_b32 v2, 3, v2\ns_lshl_b32 s18, s3, 14\ns_add_u32 s18, s18, {LW}\nv_lshl_add_u32 v{VB_}, v1, 6, v2\nv_add_u32 v{VB_}, s18, v{VB_}')
    K.e('v_lshl_add_u32 v1, v1, 7, v2\nv_bfe_u32 v2, v0, 3, 2')
    K.e('v_xor_b32 v2, s3, v2')
    for mt in range(4): K.e(f'v_xor_b32 v{VT+mt}, {mt}, v2\nv_lshl_add_u32 v{VT+mt}, v{VT+mt}, 5, v1')
    for r in range(VXR, VT + 4): K.e(f'v_add_u32 v{VHI + r - VXR}, {3 * HS}, v{r}')
    K.e(f'v_and_b32 v1, 1, v0\nv_mul_u32_u24 v2, {STS - STC}, v1\nv_lshrrev_b32 v3, 4, v0\nv_lshl_add_u32 v2, v3, 4, v2\nv_add_u32 v{VF}, {STC}, v2')
    K.e(f'v_lshlrev_b32 v1, 4, v1\nv_mov_b32 v2, 0xffff\nv_lshlrev_b32 v1, v1, v2\nv_bfe_u32 v2, v0, 2, 2\nv_cmp_eq_u32 vcc, v2, v3\nv_cndmask_b32 v1, 0, v1, vcc')
    K.e(f'v_and_b32 v2, 2, v0\nv_cmp_eq_u32 vcc, 0, v2\nv_cndmask_b32 v{VM0}, 0, v1, vcc\nv_xor_b32 v{VM0+1}, v1, v{VM0}')
    setup()
    srd(K, 44, 8, WS_FLAG, F_SIZE1)
    K.e(f's_add_u32 s59, s59, 0x9e3779b9')
    issue(n1)
    ST('setup')
    K.e(unpack(VS, 4) + unpack(VS + 2, 5))
    for j in range(4): K.e(f'v_mul_f32 v{4+j}, {f2h(-LOG2E)}, v{VS+j}')
    for j in range(4): K.e(f'v_exp_f32 v{4+j}, v{4+j}')
    for j in range(4): K.e(f'v_add_f32 v{4+j}, 1.0, v{4+j}')
    for j in range(4): K.e(f'v_rcp_f32 v{4+j}, v{4+j}')
    for j in range(4): K.e(f'v_mul_f32 v{VS+j}, v{VS+j}, v{4+j}')
    K.e(f'v_cvt_pk_bf16_f32 v4, v{VS}, v{VS+1}\nv_cvt_pk_bf16_f32 v5, v{VS+2}, v{VS+3}')
    K.e(f's_lshl_b32 s18, s3, 9\nv_lshl_add_u32 v1, v0, 3, s18\nds_write_b64 v1, v[4:5] offset:{SC - LKV}'.replace('s_lshl_b32 s18, s3, 9', f's_lshl_b32 s18, s3, 9\ns_add_u32 s18, s18, {LKV}'))
    K.e(unpack(VS, 4) + unpack(VS + 2, 5))
    for bit in (range(2) if GX else ()):
        K.e(f's_bitcmp1_b32 s2, {3 + bit}\ns_cbranch_scc0 {name}_gs{bit}')
        for x in ((0, 2), (0, 1))[bit]: K.e(f'v_swap_b32 v{VS+x}, v{VS+x+1+bit}')
        K.e(f'{name}_gs{bit}:')
    K.e(f'v_lshrrev_b32 v1, 4, v0\nv_lshlrev_b32 v1, 3, v1\ns_lshl_b32 s18, s3, 5\ns_add_u32 s18, s18, {SH}\nv_add_u32 v1, s18, v1')
    K.e(f'v_and_b32 v2, 3, v0\nv_lshlrev_b32 v2, 3, v2\nv_add_u32 v2, {SH}, v2')
    A = 24; T = 32
    for r in range(4):
        for j in range(4): K.e(unpack(T + 2 * j, W + 4 * r + j))
        if r in opt.get('ng', {}): issue(opt['ng'][r])
        for c in range(8): K.e(f'v_mul_f32 v{A+c}, v{VS}, v{T+c}' if r == 0 else f'v_fmac_f32 v{A+c}, v{VS+r}, v{T+c}')
    ST('gemv')
    reduce_rows(K, A, 8)
    K.e('s_mov_b32 exec_lo, 0x00010001\ns_mov_b32 exec_hi, 0x00010001')
    K.e(f'ds_write_b64 v1, {v(A,2)}\ns_mov_b64 exec, -1\n@waitlg all\ns_barrier')
    for w in range(4): K.e(f'ds_read_b64 {v(8+2*w,2)}, v2 offset:{32*w}')
    K.e(f'v_lshrrev_b32 v1, 4, v0\ns_lshl_b32 s18, s3, 9\ns_add_u32 s18, s18, {SC}\nv_lshl_add_u32 v1, v1, 4, s18')
    K.e('v_add_f32 v8, v8, v10\nv_add_f32 v9, v9, v11\nv_add_f32 v12, v12, v14\nv_add_f32 v13, v13, v15\nv_add_f32 v8, v8, v12\nv_add_f32 v9, v9, v13')
    round_pair(K, 8, 58)
    K.e(f'v_mov_b32 v11, s59\nbuffer_store_dwordx2 v[10:11], v{VGRW}, s[44:47], 0 offen sc1')
    for i in range(8): K.e(f'ds_read_b128 {a(AS+4*i,4)}, v1 offset:{64*i}')
    ST('pubG')
    PO = 24
    pl = [f'buffer_load_dwordx4 {v(PO+4*e,4)}, v{VPOLL}, s[44:47], 0 offen offset:{16*e} sc1' for e in range(2)]
    issue(n2)
    ST('i2')
    early = opt.get('early', 1)
    if early == 1: K.e(pl)
    issue(n3)
    ST('i3')
    SA = 188; ONE = 204
    for j in range(4): K.e(f'v_mov_b32 v{ONE+j}, 0x3f803f80')
    K.e('v_and_b32 v1, 3, v0\nv_cmp_eq_u32 s[16:17], 1, v1\nv_cmp_eq_u32 s[18:19], 2, v1\nv_cmp_eq_u32 vcc, 3, v1')
    K.e(f'v_and_b32 v3, 15, v0\nv_lshlrev_b32 v3, 3, v3\nv_add_u32 v3, {SH}, v3\ns_lshl_b32 s51, s3, 7\nv_add_u32 v1, s51, v3\nv_or_b32 v2, v{VM0}, v{VM0+1}')
    wr = [f'ds_read_b64_tr_b16 {v(WK+8*i+4*dt+2*tt,2)}, v{VB_} offset:{2048*i + 256*tt + 32*dt}' for i in range(8) for dt in range(2) for tt in range(2)]
    sl = []
    for i in range(8):
        x = v(XK + 4 * i, 4)
        for k, av in enumerate((v(ONE, 4), x)):
            d = v(SA + 4 * k, 4); sl.append([f'{MF} {d}, {av}, {x}, ' + ('0' if i == 0 else d)])
    def take(n):
        L = [Qv.pop(0) for _ in range(max(0, n - cnt[0]))]; cnt[0] += len(L); return L
    SF = opt.get('sf', 1)
    if SF: L = take(opt.get('ns', 30)); K.e(flatten(interleave(sl, L, 1, 1, max(1, 15 // max(1, len(L))))))
    else:
        K.e('@waitvm KVW')
        ST('gotW')
        if early == 3: K.e(pl)
        K.e(flatten(interleave(sl, wr, 0, 2, 1)))
    K.e(f'v_cndmask_b32 v{SA+1}, v{SA+4}, v{SA+5}, s[16:17]\nv_cndmask_b32 v{SA+1}, v{SA+1}, v{SA+6}, s[18:19]\nv_cndmask_b32 v{SA+1}, v{SA+1}, v{SA+7}, vcc')
    K.e(f'v_cmp_ne_u32 vcc, 0, v2\ns_mov_b64 exec, vcc\nds_write_b64 v1, {v(SA,2)} offset:256')
    K.e('s_mov_b64 exec, -1\n@waitlg all\ns_barrier')
    for w in range(4): K.e(f'ds_read_b64 {v(8+2*w,2)}, v3 offset:{256 + 128*w}')
    K.e('v_add_f32 v8, v8, v10\nv_add_f32 v9, v9, v11\nv_add_f32 v12, v12, v14\nv_add_f32 v13, v13, v15\nv_add_f32 v8, v8, v12\nv_add_f32 v9, v9, v13')
    K.e(f'v_mul_f32 v8, {f2h(-1.0/1024)}, v8\nv_mul_f32 v9, {f2h(1.0/1024)}, v9\nv_fma_f32 v9, -v8, v8, v9\nv_max_f32 v9, 0, v9\nv_add_f32 v9, {f2h(1e-5)}, v9')
    KS = 168; VS4 = 172
    ST('st')
    if early == 2: K.e(pl)
    issue(n4)
    K.e(f'v_rsq_f32 v{KS}, v9\nv_mov_b32 v13, s59\nv_mul_f32 v{KS+1}, v8, v{KS}\nv_mov_b32 v12, v{KS}\nv_mov_b32 v14, v{KS+1}\nv_mov_b32 v15, s59')
    K.e(f'buffer_store_dwordx4 v[12:15], v{VS1W}, s[44:47], 0 offen sc1')
    K.e(f'ds_write_b64 v1, {v(KS,2)} offset:1024')
    K.e(f's_lshl_b32 s51, s3, 7\ns_add_u32 s51, s51, {SH}\nv_lshrrev_b32 v1, 4, v0\nv_lshl_add_u32 v1, v1, 5, s51\n@waitlg all')
    for e in range(2): K.e(f'ds_read_b128 {v(VS4+4*e,4)}, v1 offset:{1024 + 16*e}')
    K.e(f's_lshl_b32 s51, s3, 12\ns_add_u32 s51, s51, {RED}\nv_lshlrev_b32 v1, 4, v0\nv_add_u32 v{VA}, s51, v1')
    K.e(f's_and_b32 s51, s3, 1\ns_lshl_b32 s51, s51, 10\ns_add_u32 s51, s51, {RED}\nv_add_u32 v2, s51, v1')
    if SF:
        K.e('@waitvm KVW')
        ST('gotW')
        if early == 3: K.e(pl)
        assert opt.get('nw', 42) <= 42 and n4 <= 42
        L = take(opt.get('nw', 42)); K.e(flatten(interleave([[x] for x in wr], L, 1, 1, max(1, 31 // max(1, len(L))))))
    K.e(f's_lshl_b32 s51, s3, 9\nv_add_u32 v{VB_}, s51, v{VF}')
    ST('rdy')
    spin(K, pl, [PO + 1, PO + 3, PO + 5, PO + 7], early, None)
    K.e(f'ds_write2_b32 v{VSTG}, v{PO}, v{PO+2} offset0:0 offset1:1\nds_write2_b32 v{VSTG}, v{PO+4}, v{PO+6} offset0:2 offset1:3\n@waitlg all\ns_barrier')
    ST('T0')
    F8 = 4
    for i in range(8): K.e(f'ds_read_b128 {v(F8+4*i,4)}, v{VB_} offset:{64*i}')
    issue(n5)
    OP = [196, 200]; D = 188; KA_ = [36, 180]; KU = [VS, 204]
    def ands(f, op): return [f'v_and_b32_dpp v{op+j}, v{f+j}, v{VM0+(j&1)} {DPPE}' for j in range(4)]
    def cvt(dst, d): return [f'v_cvt_pk_bf16_f32 v{dst}, v{d}, v{d+1}', f'v_cvt_pk_bf16_f32 v{dst+1}, v{d+2}, v{d+3}']
    jq = list(Qv); pj = -(-len(jq) // 8)
    def job(isv):
        two = lambda w_, x_: (x_, w_) if isv else (w_, x_)
        dg = lambda i, k: f'{M16} {v(D+4*k,4)}, {v(OP[i%2]+2*k,2)}, {v(XK+4*i+2*k,2)}, 0'
        cv = lambda i, k: cvt(XK + 4 * i + 2 * k, D + 4 * k)
        def mm(acc, i, dt, o): return '%s %s, %s, %s, %s' % ((MF, v(acc, 4)) + two(v(WK + 8 * i + 4 * dt, 4), v(o + 4 * i, 4)) + ('0' if i == 0 else v(acc, 4),))
        K.e(ands(F8, OP[0]) + [dg(0, 0), dg(0, 1)] + ands(F8 + 4, OP[1]) + cv(0, 0) + cv(0, 1))
        for i in range(8):
            n = i + 1; an = ands(F8 + 4 * (i + 2), OP[i % 2]) if i + 2 < 8 else []
            if n < 8: sl = [[dg(n, 0)] + an[:2], [dg(n, 1)] + an[2:], [mm(KU[0], i, 0, F8)], [mm(KU[1], i, 1, F8)] + cv(n, 0), [mm(KA_[0], i, 0, XK)] + cv(n, 1), [mm(KA_[1], i, 1, XK)]]
            else: sl = [[mm(KU[0], i, 0, F8)], [mm(KU[1], i, 1, F8)], [mm(KA_[0], i, 0, XK)], [mm(KA_[1], i, 1, XK)]]
            if pj: interleave(sl, jq[pj * i: pj * i + pj], 2, 1, 3 if pj <= 2 else 1)
            K.e(flatten(sl))
        for k, r in enumerate(KU + KA_): K.e(f'ds_write_b128 v{VA}, {v(r,4)} offset:{(2048 + 1024*k) % 4096}')
        K.e('@waitvm W0\n@waitlg all\ns_barrier')
        for w in range(4): K.e(f'ds_read_b128 {v(48+4*w,4)}, v2 offset:{4096*w + 2048}')
        for w in range(4): K.e(f'ds_read_b128 {v(64+4*w,4)}, v2 offset:{4096*w}')
        for b in (48, 64):
            for j in range(2 if isv and b == 48 else 4): K.e(f'v_add_f32 v{b+j}, v{b+j}, v{b+4+j}\nv_add_f32 v{b+8+j}, v{b+8+j}, v{b+12+j}')
            for j in range(2 if isv and b == 48 else 4): K.e(f'v_add_f32 v{b+j}, v{b+j}, v{b+8+j}')
            if b == 48 and not isv:
                for j in range(4): K.e(f'v_mov_b32_dpp v{52+j}, v{48+j} {DPPO}')
                for j in range(4): K.e(f'v_mul_f32_dpp v{48+j}, v{48+j}, v{KS+1} {DPPE}')
                for j in range(4): K.e(f'v_add_f32 v{52+j}, v{52+j}, v{48+j}')
            if b == 48 and isv:
                for j in range(4): K.e(f'v_fma_f32 v{52+j}, v{VS4+2*j+1}, v48, v49')
        for j in range(4): K.e(f'v_fma_f32 v{64+j}, v{64+j}, v{VS4+2*j if isv else KS}, v{52+j}')
        K.e(cvt(64, 64))
        K.e(f'buffer_store_dwordx2 v[64:65], v{VKVW}, s[28:31], 0 offen sc1', 'KVS')
    K.e(f's_bitcmp1_b32 s13, 0\ns_cbranch_scc1 {name}_jv\n@save j')
    job(False)
    K.e(f's_branch {name}_jx\n{name}_jv:\n@restore j\n@hzreset')
    job(True)
    K.e(f'{name}_jx:')
    ST('kv')
    AF = [48, 64]; FR = [88, 92, 96, 100]; OP = [104, 108]; D = 112; XS = [128, 136]; UA = 36; VU4 = 180
    def areads(t):
        b = AF[t % 2]; L = []
        for mt in range(4):
            r, o = rd(VT + mt, slot(t // 2)); L += [f'ds_read_b64_tr_b16 {v(b+4*mt+2*tt,2)}, v{r} offset:{o + 4096*(t%2) + 512*tt}' for tt in range(2)]
        return L
    def fread(t): return [f'ds_read_b128 {v(FR[t%4],4)}, v{VF} offset:{64*t}']
    dg = lambda t, k: f'{M16} {v(D+4*k,4)}, {v(OP[t%2]+2*(k>>1),2)}, {a(xreg(t)+4*(k&1)+2*(k>>1),2)}, 0'
    cv = lambda t, k: cvt(XS[t % 2] + 4 * (k & 1) + 2 * (k >> 1), D + 4 * k)
    K.e(fread(0) + ['@waitvm X0'] + xreads(0) + fread(1) + xreads(1) + fread(2) + fread(3) + areads(0))
    K.e(ands(FR[0], OP[0]) + ands(FR[1], OP[1]) + [dg(0, k) for k in range(4)] + ['@waitvm X1'] + xreads(2) + cv(0, 0) + cv(0, 1) + cv(0, 2))
    PK = opt.get('PK', 3); per = opt.get('perq', 4)
    chk = [f'buffer_load_dwordx2 {v(QST+8,2)}, v{VKP}, s[44:47], 0 offen sc1'] + \
          [f'buffer_load_dwordx4 {v(QST+4*nt,4)}, v{VS1R}, s[44:47], 0 offen offset:{256*nt} sc1' for nt in range(2)]
    nonce = [[f'buffer_store_dword v{VA+1}, v{VA}, s[44:47], 0 offen']]
    late = {23: ringq[2:6], 25: ringq[6:10], 27: ringq[10:14], 29: ringq[14:]}
    late[X] = ringq[:2] + nonce + late.get(X, [])
    for h in range(1, 12): late[2 * h - 1] = hdma(h + 4) + late.get(2 * h - 1, [])
    Qv = []
    side = {PK: [['@waitvm KVS', f'v_mov_b32 v1, s59', f'buffer_store_dword v1, v{VKVF}, s[44:47], 0 offen sc1']],
            10: [['s_or_b32 s18, s2, s3', f's_cselect_b32 s18, {BIG}, 0'], f's_add_u32 s18, s18, {F_NONCE}', f'v_mov_b32 v{VA}, s18', 'v_cmp_eq_u32 vcc, 0, v0', f'v_mov_b32 v{VA+1}, {BIG}', f'v_cndmask_b32 v{VA}, v{VA+1}, v{VA}, vcc', f'v_mov_b32 v{VA+1}, s59'],
            11: ['v_and_b32 v1, 1, v0', 'v_cmp_eq_u32 vcc, 1, v1', 'v_mov_b32 v1, s4', f'v_cndmask_b32 v{VS}, 1.0, v1, vcc',
                 'v_and_b32 v1, 1, v0', 'v_lshlrev_b32 v1, 6, v1', 'v_lshrrev_b32 v2, 4, v0', 'v_lshlrev_b32 v2, 4, v2'],
            12: ['s_lshl_b32 s18, s3, 7', 'v_add3_u32 v1, v1, v2, s18', f'v_add_u32 v{VS+1}, {UTX}, v1', f'v_add_u32 v2, {UTX}, v2', f'v_add_u32 v{VU4}, s18, v2'] +
                [f'v_xor_b32 v{VU4+k}, {128*k}, v{VU4}' for k in range(1, 4)],
            13: ['v_lshrrev_b32 v1, 1, v0', 'v_mul_u32_u24 v1, 12288, v1', 'v_and_b32 v2, 1, v0', f'v_lshl_add_u32 v{VG}, v2, 4, v1']}
    assert PK < 10 and X in (21, 22, 23)
    side.setdefault(X - opt.get('XD', 2), []).append(chk)
    for t in range(32):
        b = AF[t % 2]; n = t + 1
        q = []
        for mt in range(4):
            for k in range(2):
                nt = k if mt % 2 == 0 else 1 - k
                d = v(qacc(mt, nt), 4); q.append([f'{MF} {d}, {v(b+4*mt,4)}, {v(XS[t%2]+4*nt,4)}, ' + ('0' if t == 0 else d)])
        u = f'{MF} {v(UA,4)}, {v(b,4)}, {v(FR[t%4],4)}, ' + ('0' if t == 0 else v(UA, 4))
        an = ands(FR[(t + 2) % 4], OP[t % 2]) if t + 2 < 32 else []
        if n < 32: sl = [[dg(n, 0)] + cv(t, 3), [dg(n, 1)] + an[:2], [dg(n, 2)] + an[2:], [dg(n, 3)] + cv(n, 0), [u] + cv(n, 1), q[0] + cv(n, 2)] + q[1:]
        else: sl = [cv(t, 3), [u]] + q
        r0 = opt.get('r0', 6)
        sl[4 if n < 32 else 1].insert(0, f'@waitlg S{t}')
        if n < 32:
            if n % 2 == 0: sl[r0 - 1] += [f'@waitvm W{n // 2} X{n // 2 + 1}', 's_barrier']
            rl = areads(n) + (xreads(t + 3) if t + 3 < 32 else []) + (fread(t + 4) if t + 4 < 32 else []); rl[-1] = (rl[-1], f'S{n}')
            interleave(sl, rl, r0, opt.get('rper', 2), 1)
        Qv += late.pop(t, [])
        k = len(Qv) if t % 2 == 0 or t == 31 else (len(Qv) + 1) // 2
        vm = Qv[:k]; del Qv[:k]
        pos = list(opt.get('dpo', (10, 11, 12)) if t % 2 else opt.get('dpe', (10, 11, 12)))
        if t == 1 or t >= 23 and t % 2: pos = [p for p in range(r0, 13, 2)]
        if len(vm) <= len(pos):
            for p, g in zip(pos, vm): sl[p] += g
        else: interleave(sl, vm, 1, 1, 3 if len(vm) <= 4 else 2 if len(vm) <= 6 else 1)
        if t in side: interleave(sl, side[t], 5, 1, 1)
        if t == X:
            spin(K, chk, [QST + 8, QST + 9, QST + 1, QST + 3, QST + 5, QST + 7], True, None)
            ST('gotKV')
        if t == 31:
            sl[4] += [f'v_mul_f32 v{UA+j}, v{UA+j}, v{VS}' for j in range(4)]
            sl[5] += ['s_mov_b32 exec_lo, 0x00030003', 's_mov_b32 exec_hi, 0x00030003', f'ds_write_b128 v{VS+1}, {v(UA,4)}', 's_mov_b64 exec, -1']
            for nt in range(2): sl[2 + nt] += [f'v_mul_f32 v{QST+4*nt+j}, s4, v{QST+4*nt+(j&2)}' for j in (1, 0, 3, 2)]
        if t % 4 == 3: ST(f'q{t}')
        ex = opt.get('drop', ())
        K.e([x for x in flatten(sl) if not (t > 2 and any(p in (x[0] if isinstance(x, tuple) else x) for p in ex))])
    assert not late and not Qv
    K.e('@waitlg all\ns_barrier')
    U = 48
    for mt in range(4):
        for e in range(2): K.e(f'ds_read_b128 {v(U+8*mt+4*e,4)}, v{VU4+mt} offset:{64*e}')
    ST('qproj')
    Q = [168, 176]
    for mt in range(4):
        q = Q[mt >> 1] + 4 * (mt & 1)
        for nt in range(2):
            A0 = qacc(mt, nt); z = 80 + 4 * nt
            for j in (0, 2): K.e(f'v_pk_fma_f32 {v(z+j,2)}, {v(U+8*mt+j,2)}, {v(QST+4*nt+2,2)}, {v(U+8*mt+4+j,2)}')
            for j in (0, 2): K.e(f'v_pk_fma_f32 {v(A0+j,2)}, {v(A0+j,2)}, {v(QST+4*nt,2)}, {v(z+j,2)}')
            K.e(cvt(q + 2 * nt, A0))
        K.e(f'v_permlane16_swap_b32 v{q}, v{q+2}\nv_permlane16_swap_b32 v{q+1}, v{q+3}')
    for bit, prs in ((0, [(Q[h] + j, Q[h] + 4 + j) for h in range(2) for j in range(4)]), (1, [(Q[0] + j, Q[1] + j) for j in range(8)])):
        K.e(f's_bitcmp1_b32 s3, {bit}\ns_cbranch_scc0 {name}_qs{bit}')
        for x, y in prs: K.e(f'v_swap_b32 v{x}, v{y}')
        K.e(f'{name}_qs{bit}:\ns_nop 1')

def rest_init(K):
    K.e('s_and_b32 s50, s2, 7\ns_lshl_b32 s50, s50, 5\ns_lshr_b32 s49, s2, 3\ns_add_u32 s50, s50, s49\ns_lshl_b32 s50, s50, 5\ns_and_b32 s49, s49, 3\ns_lshl_b32 s49, s49, 1')
    K.e(f's_mul_i32 s51, s3, {256*12288}\ns_add_u32 s50, s50, s51\ns_add_u32 s50, s50, 4096\ns_lshl_b32 s51, s3, 10\ns_add_u32 s51, s51, {LKV}')
def rest_dma(n, fl=''):
    return [[f's_xor_b32 s16, s49, {n}'], [f's_mul_i32 s17, s16, {32*12288}'], ['s_add_u32 s17, s17, s50'], ['s_lshl_b32 s16, s16, 12'], ['s_add_u32 m0, s16, s51'],
            [(f'buffer_load_dwordx4 v{VG}, s[36:39], s17 offen{fl} lds', 'AG')]]
def rest_gemv(K):
    P = []
    K.e(f'v_lshrrev_b32 v3, 4, v0\nv_lshlrev_b32 v1, 3, v3\nv_bfe_u32 v2, v0, 2, 2\nv_add_u32 v1, v1, v2\nv_and_b32 v2, 3, v0\nv_lshlrev_b32 v2, 3, v2')
    K.e(f'v_lshl_add_u32 v1, v1, 5, v2\nv_add_u32 v1, s51, v1\n@waitvm AG')
    for i in range(8):
        for tt in range(2): K.e(f'ds_read_b64_tr_b16 {v(12+4*i+2*tt,2)}, v1 offset:{agblk(i) - LKV + 128*tt}')
    P.append(K.take())
    for i in range(8): K.e(f'{MF} {v(4+4*(i&1),4)}, {v(12+4*i,4)}, {a(AS+4*i,4)}, ' + ('0' if i < 2 else v(4+4*(i&1),4)))
    K.e(f'v_lshl_add_u32 v1, v3, 4, s51\nv_and_b32 v2, 7, v0\nv_lshlrev_b32 v2, 3, v2\nv_add_u32 v3, {LKV}, v2')
    P.append(K.take())
    for j in range(4): K.e(f'v_add_f32 v{4+j}, v{4+j}, v{8+j}')
    K.e('s_mov_b32 exec_lo, 0x00010001\ns_mov_b32 exec_hi, 0x00010001')
    K.e(f'ds_write_b128 v1, v[4:7]\ns_mov_b64 exec, -1')
    P.append(K.take())
    for w in range(4): K.e(f'ds_read_b64 {v(8+2*w,2)}, v3 offset:{1024*w}')
    K.e('s_and_b32 s16, s2, 7\ns_lshl_b32 s16, s16, 5\ns_lshr_b32 s17, s2, 3\ns_add_u32 s16, s16, s17\ns_lshl_b32 s19, s16, 2')
    K.e('s_lshr_b32 s17, s16, 6\ns_cmp_eq_u32 s17, 2\ns_cselect_b32 s17, 1.0, 0')
    K.e(f's_lshl_b32 s16, s16, 6\ns_add_u32 s16, s16, {WS_MOD + 8192}\ns_or_b32 s18, s3, s12\ns_cselect_b32 s16, {BIG}, s16')
    K.e(f'v_add_u32 v2, s16, v2\nv_cmp_gt_u32 vcc, 8, v0\nv_mov_b32 v20, {BIG}\nv_cndmask_b32 v2, v20, v2, vcc\nv_lshrrev_b32 v16, 1, v2\nv_add_u32 v16, {WS_MODB - WS_MOD // 2}, v16')
    K.e('v_and_b32 v17, 0x18, v16\nv_bfe_u32 v18, v16, 5, 1\nv_and_b32 v16, 0xffffffc7, v16\nv_lshl_add_u32 v16, v17, 1, v16\nv_lshl_add_u32 v16, v18, 3, v16')
    srd(K, 20, 8, 0, WS_MODB + 6144 * 2)
    P.append(K.take())
    K.e('v_add_f32 v8, v8, v10\nv_add_f32 v9, v9, v11\nv_add_f32 v12, v12, v14\nv_add_f32 v13, v13, v15\nv_add_f32 v8, v8, v12\nv_add_f32 v9, v9, v13')
    round_pair(K, 8, 17)
    K.e(unpack(8, 10))
    K.e('buffer_store_dwordx2 v[8:9], v2, s[20:23], 0 offen sc1\nbuffer_store_dword v10, v16, s[20:23], 0 offen sc1', 'MS')
    K.e(f's_add_u32 s19, s19, {F_M}\ns_cmp_lg_u32 s3, 0\ns_cselect_b32 s19, {BIG}, s19\nv_mov_b32 v4, s19\nv_cmp_eq_u32 vcc, 0, v0\nv_cndmask_b32 v4, v20, v4, vcc\nv_mov_b32 v5, s59')
    P.append(K.take())
    return P
```

```python
from k3 import *
STG = 28672; UPO = 14336
SLOT5 = [131072, 0, STG, 2 * STG, 3 * STG]
FLAG = 131072 + STG
VD5 = 224
VDO = 244
S5W = 60
S5T = 94; S5N = 95; S5M = 96
AX1 = 236

def k5_ids(K):
    K.e(f's_and_b32 s16, s10, 1\ns_lshl_b32 s16, s16, 2\ns_and_b32 s19, s11, 3\ns_add_u32 s16, s16, s19')
    K.e(f's_lshl_b32 s16, s16, 4\ns_lshl_b32 s19, s3, 2\ns_add_u32 s{S5T}, s16, s19')
    K.e(f's_lshr_b32 s16, s10, 1\ns_lshl_b32 s16, s16, 3\ns_lshr_b32 s19, s11, 2\ns_add_u32 s{S5N}, s16, s19')
    K.e(f's_mul_i32 s{S5M}, s3, 7168')
    K.e(f's_cmp_ge_u32 s3, 2\ns_cselect_b32 s{S5W}, s46, s44\ns_cselect_b32 s{S5W+1}, s47, s45')
    K.e(f's_mov_b32 s{S5W+2}, {1024*7168}\ns_mov_b32 s{S5W+3}, 0x00020000')
    K.e(f's_and_b32 s16, s3, 1\ns_mul_i32 s16, s16, {32*7168}\ns_mul_i32 s19, s{S5N}, 224\ns_add_u32 s16, s16, s19')
    K.e(f's_mov_b32 s19, 0x124a\ns_and_b32 s18, s{S5N}, 1\ns_lshl_b32 s18, s18, 1')
    for i in range(7):
        K.e(f'v_add_u32 v1, {64*i}, v0')
        K.e('v_mul_lo_u32 v2, v1, s19\nv_lshrrev_b32 v2, 16, v2')
        K.e('v_mul_u32_u24 v3, 14, v2\nv_sub_u32 v1, v1, v3\nv_add_u32 v1, s18, v1')
        K.e('v_subrev_u32 v3, 14, v1\nv_min_u32 v1, v1, v3')
        K.e('v_mul_u32_u24 v2, 7168, v2\nv_lshl_add_u32 v1, v1, 4, v2')
        K.e(f'v_add_u32 v{VD5+i}, s16, v1')
        if i % 4: K.e(f'v_subrev_u32 v{VD5+i}, {1024*(i%4)}, v{VD5+i}')
def dma5(st, ssw, first=False):
    L = []; slot = SLOT5[st % 5]
    for i in range(7):
        off = f' offset:{1024*(i%4)}' if i % 4 else ''
        g = [(f'buffer_load_dwordx4 v{VD5+i}, {s(S5W,4)}, s{ssw} offen{off} lds', f'G{st}')]
        if i == 0 and first: g = [f's_add_u32 m0, s{S5M}, {slot}', f's_mov_b32 s{ssw}, {st*64*7168}'] + g
        if i == 3: g.append(f's_add_u32 m0, s{S5M}, {slot + 4096}')
        if i == 6: g += [f's_add_u32 s{ssw}, s{ssw}, {64*7168}', f's_add_u32 m0, s{S5M}, {SLOT5[(st+1) % 5]}']
        L.append(g)
    return L

def build_mega(name='m_kernel', opt=None):
    opt = opt or {}
    upto = opt.get('upto', 6)
    K = Kernel(name); ST = Stamps(K, opt.get('stamp'), opt.get('kidx', 0), opt.get('skip', ('i2', 'i3', 'gotW', 'st', 'a', 'b', 'c', 'd', 'setup', 'gemv', 'pubG', 'rdy', 'T0', 'kv', 'gotKV') + tuple(f'q{t}' for t in range(32))))
    if opt.get('only'): ST.skip = (); ST.only = opt['only'].split()
    K.e(f'{name}_c0:')
    guard(K, 256)
    ST('start')
    K.e(f's_load_dwordx2 s[4:5], s[0:1], {KA["wq"]}')
    K.e(f's_load_dwordx2 s[8:9], s[0:1], {KA["ws"]}')
    K.e(f's_load_dwordx2 s[98:99], s[0:1], {KA["wo"]}')
    K.e(f's_load_dwordx2 s[100:101], s[0:1], {KA["wd"]}')
    K.e(f's_load_dwordx4 s[44:47], s[0:1], {KA["wg"]}')
    K.e(f's_load_dwordx2 s[64:65], s[0:1], {KA["x"]}')
    f1 = opt.get('f1'); kvf = ' sc1' if f1 else ''
    TAG['val'] = 's59' if f1 else '1'
    VP = 240
    G4 = GW(K, 4, 32, 'om', dict(acc=4, vd=VDO, vb=40, vt=42, aa=0, ab=48), 8, opt.get('R4', 16), resident=True, bflag=' sc1', srdW=52, tag='O')
    VP4 = VP if opt.get('perm4', 'lead') == 'lead' else 242
    G4.VP = VP4; G4.QW = []
    S = [48, 64]; NM = [80, 96]; P = [112, 120]; L = [128, 132]; O = [136, 152]; Q = [168, 176]; SEL = 184
    F = [188, 204]; VRD = 220; VL = 221; VS0 = 222; VB2 = 231; VJ = 232; VO = 233; VU = 234; VM = 236; VJK = 237
    VFA = 248; VFP = 249; VFT = 250
    RING = 65536
    fr = v
    def ring_pro():
        Lq = [[f'buffer_load_dwordx4 {fr(F[1]+8+4*b,4)}, v{VL}, s[28:31], 0 offen offset:{1024*b}{kvf}'] for b in range(2)]
        for st in range(4):
            for i in range(4):
                g = []
                if i == 0: g = [f's_add_u32 m0, s56, {16384*st}', ('s_mov_b32 s42, s6' if st == 0 else 's_add_u32 s42, s42, 16384')]
                Lq.append(g + [(f'buffer_load_dwordx4 v{VL}, s[28:31], s42 offen offset:{1024*i}{kvf} lds', f'R{st}')])
        return Lq
    def late_srds(K=K):
        srd(K, 36, 8, WS_O, 0x400000)
        srd(K, 44, 8, WS_MODB, 6144 * 2)
        srd(K, 48, 8, WS_UTF, 224 * 1024)
    def setup():
        if VP4 != VP: perm_table(K, VP4, 8, opt['perm4'], 1, 2)
        K.e('s_lshl_b32 s18, s3, 16\ns_add_u32 s18, s18, s14')
        K.e('v_bfe_u32 v1, v0, 4, 2\nv_lshlrev_b32 v1, 1, v1\nv_xor_b32 v1, v1, v0\nv_and_b32 v1, 7, v1\nv_lshlrev_b32 v1, 4, v1')
        K.e(f'v_lshrrev_b32 v2, 3, v0\nv_lshl_add_u32 v1, v2, 11, v1\nv_add_u32 v{VDO}, s18, v1')
        for i in range(1, 4): K.e(f'v_add_u32 v{VDO+i}, {i * (8 * 2048 - 1024)}, v{VDO}')
        if upto >= 5: k5_ids(K)
        srd(K, 28, 8, WS_KV, 0x40000)
        srd(K, 52, 98, 0, 1024 * 2048)
        K.e(f'v_lshlrev_b32 v{VL}, 4, v0\nv_add_u32 v{VB2}, {RING}, v{VL}')
        K.e(f's_lshl_b32 s56, s3, 12\ns_add_u32 s6, s56, 2048\ns_add_u32 s56, s56, {RING}')
        K.e(f's_lshl_b32 s7, s2, 2\ns_add_u32 s7, s7, s3\ns_lshl_b32 s7, s7, 11\nv_lshlrev_b32 v{VJ}, 5, v0')
        K.e(f's_lshl_b32 s16, s12, {5+FSH}\ns_lshl_b32 s19, s13, {FSH}\ns_add_u32 s19, s19, s16\ns_lshl_b32 s18, s2, {FSH}\ns_add_u32 s18, s18, {F_U}')
        K.e(f'v_mov_b32 v{VFA}, s19\nv_writelane_b32 v{VFA}, s18, 1\nv_and_b32 v1, 15, v0\nv_lshl_add_u32 v{VFP}, v1, {FSH}, s16')
        K.e('s_and_b32 s10, s2, 3\ns_lshr_b32 s11, s2, 2\ns_cmp_ge_u32 s11, 28\ns_cselect_b32 s32, s46, s44\ns_cselect_b32 s33, s47, s45')
        K.e('s_cselect_b32 s16, 28, 0\ns_cselect_b32 s97, 8, 0\ns_sub_u32 s11, s11, s16')
        K.e(f's_cmp_ge_u32 s2, 224\ns_cselect_b32 s34, 0, {1024*7168}\ns_mov_b32 s35, 0x00020000')
        K.e('v_lshrrev_b32 v1, 4, v0\nv_mul_u32_u24 v2, 7168, v1\nv_lshlrev_b32 v1, 1, v1\nv_xor_b32 v1, v1, v0\nv_and_b32 v1, 15, v1')
        K.e(f'v_lshl_add_u32 v{VS0}, v1, 4, v2\nv_xor_b32 v1, 8, v1\nv_lshl_add_u32 v1, v1, 4, v2\nv_add_u32 v{VS0+1}, {4*7168-1024}, v1')
        K.e(f'v_lshrrev_b32 v1, 2, v0\nv_xor_b32 v1, v1, v0\nv_bfe_u32 v1, v1, 2, 1\nv_add_u32 v1, -1, v1\nv_and_b32 v{SEL}, 0x3f803f80, v1')
        for i in range(1, 4): K.e(f'v_mov_b32 v{SEL+i}, v{SEL}')
        K.e(f'v_bfe_u32 v1, v0, 4, 1\nv_lshlrev_b32 v1, 15, v1\nv_and_b32 v2, 15, v0\nv_lshl_add_u32 v1, v2, 4, v1\nv_lshrrev_b32 v2, 5, v0\nv_lshl_add_u32 v{VO}, v2, 8, v1')
        K.e('v_lshrrev_b32 v1, 2, v0\nv_and_b32 v2, 7, v1\ns_lshl_b32 s16, s3, 1\nv_xor_b32 v2, s16, v2\nv_lshlrev_b32 v1, 8, v1\nv_lshl_add_u32 v1, v2, 5, v1')
        K.e(f'v_and_b32 v2, 3, v0\nv_lshl_add_u32 v{VU}, v2, 3, v1\nv_xor_b32 v{VU+1}, 32, v{VU}')
        K.e(f'v_and_b32 v1, 1, v0\nv_lshlrev_b32 v1, 11, v1\nv_sub_u32 v1, 8192, v1\nv_lshrrev_b32 v2, 4, v0\nv_lshl_add_u32 v1, v2, {4 if f1 else 3}, v1\ns_lshl_b32 s16, s10, 9\nv_add_u32 v{VM}, s16, v1')
        K.e(f's_mov_b32 s4, {f2h(LOG2E * 32 ** -0.5)}\ns_mov_b32 s5, s4\ns_mov_b32 s12, 0')
    if f1:
        from front import front, rest_gemv, rest_init, rest_dma, spin
        front(K, ST, opt, lambda: (perm_table(K, VP, 8, 'lead', 1, 2), setup()), ring_pro())
    else:
        tile_ids(K)
        G = G64(K, 32, 'nat', dict(acc=4, vd=36, vb=40, vt=42, aa=0, ab=32), NS=4, R=16)
        G.VP = VP; perm_table(K, VP, 8, 'lead', 1, 2)
        G.setup(0, 3, 14, 15, 1, 2)
        srd(K, 20, 4, 0, 1024 * 2048)
        srd(K, 24, 8, WS_H1, 0x400000)
        G.prologue(opt.get('pro', 2))
        if opt.get('ct'): code_touch(K, name + '_c0', name + '_end', 239, True, 46)
        setup(); late_srds()
        for g in ring_pro(): G.Q.append((99, 0, g))
        G.main({}, maxper=opt.get('maxper', 5))
        ST('qproj')
        for mt in range(4):
            q = Q[mt >> 1] + 4 * (mt & 1)
            for nt in range(2):
                A0 = G.acc(mt, nt)
                for j in (0, 2): K.e(f'v_pk_mul_f32 {v(A0+j,2)}, {v(A0+j,2)}, s[4:5]')
                K.e(f'v_cvt_pk_bf16_f32 v{q+2*nt}, v{A0}, v{A0+1}\nv_cvt_pk_bf16_f32 v{q+2*nt+1}, v{A0+2}, v{A0+3}')
            K.e(f'v_permlane16_swap_b32 v{q}, v{q+2}\nv_permlane16_swap_b32 v{q+1}, v{q+3}')
    def qk(h, fb, c): return [f'{M32} {v(S[h],16)}, {fr(fb+8,4)}, {v(Q[h],4)}, {c}', f'{M32} {v(S[h],16)}, {fr(fb+12,4)}, {v(Q[h]+4,4)}, {v(S[h],16)}']
    def pv(h, fb): return [f'{M32} {v(O[h],16)}, {fr(fb+4*b,4)}, {v(P[h]+4*b,4)}, {v(O[h],16)}' for b in range(2)]
    def ls(h): return [f'{MF} {v(L[h],4)}, {v(SEL,4)}, {v(P[h]+4*b,4)}, {v(L[h],4)}' for b in range(2)]
    def ex(h):
        va = []; s0 = S[h]
        for i in range(0, 16, 2):
            va += [f'v_exp_f32 v{s0+i}, v{s0+i}', f'v_exp_f32 v{s0+i+1}, v{s0+i+1}']
            if i >= 2: va.append(f'v_cvt_pk_bf16_f32 v{P[h]+i//2-1}, v{s0+i-2}, v{s0+i-1}')
        va.append(f'v_cvt_pk_bf16_f32 v{P[h]+7}, v{s0+14}, v{s0+15}')
        return va
    def rowmax(h, d, init):
        s0 = S[h]
        r = [f'v_max3_f32 v{d}, v{s0}, v{s0+1}, ' + (f'v{s0+2}' if init else f'v{d}')]
        k = 3 if init else 2
        while k < 15: r.append(f'v_max3_f32 v{d}, v{s0+k}, v{s0+k+1}, v{d}'); k += 2
        if k == 15: r.append(f'v_max_f32 v{d}, v{s0+15}, v{d}')
        return r
    def bcast(h, d, bias):
        K.e(f'v_mov_b32 v3, v{d}\nv_permlane32_swap_b32 v{d}, v3\nv_max_f32 v{d}, v{d}, v3\nv_sub_f32 v{NM[h]}, {f2h(-bias)}, v{d}')
        for i in range(1, 16): K.e(f'v_mov_b32 v{NM[h]+i}, v{NM[h]}')
    a0 = qk(0, F[1], '0'); b0 = qk(1, F[1], '0')
    K.e([a0[0], b0[0], a0[1], b0[1]])
    for h in range(2): K.e(rowmax(h, 1 + h, True)); bcast(h, 1 + h, opt.get('bias', 64.0))
    K.e(f'{name}_att:')
    K.e(qk(0, F[1], v(NM[0], 16)))
    for h in range(2):
        for i in range(16): K.e(f'v_mov_b32 v{O[h]+i}, 0')
        for i in range(4): K.e(f'v_mov_b32 v{L[h]+i}, 0')
    K.e(f's_mov_b32 s43, 0\nv_mov_b32 v{VRD}, v{VB2}')
    K.e(f's_lshl_b32 s57, s3, 14\ns_lshl_b32 s58, s10, 2\ns_add_u32 s58, s58, s3\ns_mul_i32 s58, s58, {64*7168}\ns_lshl_b32 s16, s11, 8\ns_add_u32 s58, s58, s16')
    if f1: rest_init(K)
    K.e(f'@waitvm R0\ns_barrier')
    def freads(fb, off): return [f'ds_read_b128 {fr(fb+4*i,4)}, v{VRD} offset:{off+1024*i}' for i in (2, 0, 3, 1)]
    if ST.only: ST('att0')
    K.e(freads(F[0], 0))
    UN = 2
    pre = spread(qk(1, F[1], v(NM[1], 16)), ex(0)[:-4])
    pre[1].insert(1, '@waitlg all')
    K.e(flatten(pre))
    def order(q, p, l):
        d = dict(q=list(q), p=list(p), l=list(l))
        return [d[c].pop(0) for c in 'qplqpl']
    def loop(lab, n, job, vmw, ag=False, sg0=None, extra=None):
        once = sg0 is not None
        if once: K.e('@alon')
        else:
            K.e(f's_mov_b32 s18, {n // UN}')
            K.e(f'@save {lab}\n@loophead {lab}\n.p2align 6\n@alon\n{name}_{lab}:')
        sl = []; gap = {}; xg = {}
        def put(g, x):
            assert g not in gap, (g, x, gap[g])
            gap[g] = x
        for sg in range(UN):
            for u in range(4):
                fb = F[u & 1]; nb = F[1 - (u & 1)]; g0 = len(sl)
                sl += spread(order(qk(0, fb, v(NM[0], 16)), pv(0, fb), ls(0)), ex(1)) + spread(order(qk(1, fb, v(NM[1], 16)), pv(1, fb), ls(1)), ex(0))
                last = sg == UN - 1
                if u < 3:
                    for k, x in enumerate(freads(nb, 16384 * sg + 4096 * (u + 1))): put(g0 + 1 + k, x)
                else:
                    put(g0, f'@waitvm R{sg0+sg+1}' if once else f's_waitcnt vmcnt({vmw[sg] if isinstance(vmw, tuple) else vmw})'); put(g0 + 1, 's_barrier')
                    for k, x in enumerate(freads(nb, 0 if last else 16384 * (sg + 1))): put(g0 + 2 + k, x)
                    for k in range(4):
                        if job == 'wo': put(g0 + 6 + k, f'buffer_load_dwordx4 v{VDO+k}, s[52:55], s42 offen offset:{1024*k} lds')
                        else: put(g0 + 6 + k, [(f'buffer_load_dwordx4 v{VL}, s[28:31], s42 offen offset:{1024*k}{kvf} lds', f'R{(sg0 or 0)+sg+4}')])
                put(g0 + 10, '@waitlg all')
                if u == 2:
                    put(g0 + 5, 's_add_u32 s42, s42, 16384' if job != 'wo' else f'v_readlane_b32 s42, v{VP4}, s17')
                    put(g0 + 6, 's_add_u32 m0, s43, s56'); put(g0 + 7, 's_add_u32 s43, s43, 16384'); put(g0 + 8, 's_and_b32 s43, s43, 0xffff')
                    if last: sl[g0 + 9].append(f'v_add_u32 v{VRD}, s43, v{VB2}')
                    if last and not once: put(g0 + 9, 's_sub_u32 s18, s18, 1'); put(g0 + 11, 's_cmp_lg_u32 s18, 0')
                if job == 'slab' and u == 0:
                    put(g0 + 5, 's_mov_b32 m0, s57'); put(g0 + 6, 's_add_u32 s57, s57, 2048')
                    put(g0 + 7, f'buffer_load_dwordx4 v{VS0}, s[32:35], s58 offen lds')
                    put(g0 + 8, f'buffer_load_dwordx4 v{VS0+1}, s[32:35], s58 offen offset:1024 lds')
                    put(g0 + 9, f's_add_u32 s58, s58, {8*7168}')
                X_ = (extra or {}).get((sg, u), [])
                lo, hi = 0, 10
                if isinstance(X_, tuple): X_, lo, hi = X_
                for k, x in enumerate(X_): xg.setdefault(g0 + lo + k * (hi - lo) // len(X_), []).extend(x)
                if job == 'wo' and u == 0:
                    put(g0, f'v_readlane_b32 s58, v{VP4}, s16'); put(g0 + 5, 's_mov_b32 m0, s57')
                    for k, g in enumerate((6, 7, 8, 9)): put(g0 + g, f'buffer_load_dwordx4 v{VDO+k}, s[52:55], s58 offen offset:{1024*k} lds')
                    put(g0 + 11, 's_add_u32 s57, s57, 16384')
                if job == 'wo' and u == 1:
                    put(g0 + 5, 's_add_u32 s17, s16, 4'); put(g0 + 6, 's_add_u32 s16, s16, 1')
        for sg in range(UN):
            for u in range(4):
                nm = f'{lab}.{sg}{u}'
                if ST.on and ST.only and nm in ST.only:
                    sl[12 * (4 * sg + u)].append(f's_memrealtime s[{66+2*ST.n}:{67+2*ST.n}] ; stamp'); ST.n += 1; ST.names.append(nm)
        for g, x in xg.items(): sl[g][1:1] = x
        for g, x in gap.items(): sl[g][1:1] = x if isinstance(x, list) else [x]
        tail = sl[-1][1:]; assert len(tail) == 4
        K.e(tail); K.e(flatten(sl)[:-4])
        K.e('@aloff' if once else f's_cbranch_scc1 {name}_{lab}\n@aloff\n@check {lab} lg\n@loopend {lab}')
        if ST.only: ST(lab)
    VX = 52; VG = 68; VC = 84; VA2 = 51; AP = 208
    def x_loads(K=K):
        srd(K, 24, 64, 0, 2048 * 2048)
        K.e(['v_and_b32 v6, 15, v0', 'v_lshlrev_b32 v6, 11, v6', 'v_bfe_u32 v2, v0, 4, 1', 'v_lshl_add_u32 v6, v2, 5, v6',
             'v_lshrrev_b32 v2, 5, v0', 'v_lshl_add_u32 v6, v2, 4, v6', 's_lshl_b32 s18, s15, 15', 's_add_u32 s18, s18, s14', 's_add_u32 s19, s18, 32768'])
        for nt in range(2):
            for aa in range(2): K.e(f'buffer_load_dwordx4 {a(AP + 8*nt + 4*aa, 4)}, v6, s[24:27], s{18+nt} offen offset:{64*aa}')
    def mod_loads(K=K):
        if f1:
            for st in range(8): K.e(f'buffer_load_dwordx4 {a(4*st,4)}, v{VM}, s[44:47], 0 offen offset:{64*st}{kvf}')
            K.e(['v_lshrrev_b32 v2, 4, v0', 'v_lshlrev_b32 v2, 4, v2', f's_add_u32 s17, s14, {4 * 2048}', f's_add_u32 s16, s14, {2 * 2048}'])
            for k in range(4): K.e(f'buffer_load_dwordx4 {a(AP + 16 + 4*k, 4)}, v2, s[44:47], s{16 + k//2} offen offset:{64*(k&1)}{kvf}')
            return
        for st in range(8):
            for tt in range(2): K.e(f'buffer_load_dwordx2 {a(4*st+2*tt,2)}, v{VM}, s[44:47], 0 offen offset:{64*st+32*tt}{kvf}')
        srd(K, 24, 8, WS_MOD, 6144 * 4)
        K.e(['v_lshrrev_b32 v2, 4, v0', 'v_lshlrev_b32 v2, 4, v2', 's_lshl_b32 s16, s14, 1', f's_add_u32 s17, s16, {4 * 4096}', f's_add_u32 s16, s16, {2 * 4096}'])
        for mt in range(4): K.e(f'buffer_load_dwordx4 {a(AP + 16 + 4*mt, 4)}, v2, s[24:27], s16 offen offset:{64*mt}{kvf}')
        for mt in range(4): K.e(f'buffer_load_dwordx4 {a(AP + 32 + 4*mt, 4)}, v2, s[24:27], s17 offen offset:{64*mt}{kvf}')
    sc = ' sc1' if upto >= 5 else ''
    def utf(K, bar):
        P = []
        for st in range(8):
            for e in range(2):
                for tt in range(2): K.e(f'ds_read_b64_tr_b16 {a(32+8*st+4*e+2*tt,2)}, v{VU+e} offset:{8192*st+4096*tt}')
        if not bar: P.append(K.take())
        for st in range(8):
            for e in range(2): K.e(f'{MF} {v(8+4*e,4)}, {a(4*st,4)}, {a(32+8*st+4*e,4)}, ' + ('0' if st == 0 else v(8+4*e,4)))
        if bar: K.e('s_barrier')
        else: P.append(K.take())
        K.e('s_lshl_b32 s16, s11, 3\ns_lshl_b32 s17, s3, 1\ns_add_u32 s16, s16, s17\ns_lshl_b32 s16, s16, 10\ns_lshl_b32 s17, s10, 8\ns_add_u32 s16, s16, s17\ns_add_u32 s16, s16, s97')
        K.e('s_cmp_ge_u32 s2, 224\ns_cselect_b32 s50, 0, s50')
        for e in range(2):
            b = 8 + 4 * e
            K.e(f'v_cvt_pk_bf16_f32 v{b+2}, v{b}, v{b+1}\nv_and_b32 v{b}, 0xffff0000, v{b+2}\nv_sub_f32 v{b+1}, v{b+1}, v{b}\nv_cvt_pk_bf16_f32 v{b+3}, v{b+1}, v{b}')
        K.e('s_mov_b64 exec, 0xffff')
        for e in range(2): K.e(f'buffer_store_dwordx2 {v(10+4*e,2)}, v{VL}, s[48:51], s16 offen offset:{1024*e}{sc}')
        K.e('s_mov_b64 exec, -1')
        if not bar: P.append(K.take())
        return P
    def warm(K=K):
        K.e(f'buffer_load_dword v{VJK}, v{VJ}, s[52:55], s7 offen')
        srd(K, 20, 100, 0, 3584 * 2048)
        K.e(f's_lshl_b32 s16, s7, 2\nv_lshlrev_b32 v1, 1, v{VJ}')
        K.e(f'buffer_load_dword v{VJK+1}, v1, s[20:23], s16 offen\ns_add_u32 s16, s16, 4096\nbuffer_load_dword v{VJK+2}, v1, s[20:23], s16 offen')
    d5b = lambda L: [[f's_add_u32 m0, s{S5M}, {SLOT5[0]}'] + L[0]] + L[1:]
    if f1:
        ag = lambda n: rest_dma(n, opt.get('gfl', ''))
        loop('l1', 2, 'slab', None, sg0=0, extra={(0, 1): ag(0), (1, 1): ag(1)})
        two = lambda sg, n: {(sg, 1): (ag(n) + ag(n + 1)[:-1], 0, 12), (sg, 2): (ag(n + 1)[-1:], 1, 2)}
        loop('l1a', 2, 'slab', None, sg0=2, extra={**two(0, 2), **two(1, 4)})
        Rc = Rec(K); RP = rest_gemv(Rc)
        loop('l1b', 2, 'slab', None, sg0=4, extra={**two(0, 6), (1, 0): RP[0], (1, 1): RP[1], (1, 2): (RP[2], 1, 8)})
        srd(Rc, 44, 8, WS_FLAG, F_SIZE1)
        Rc.e(f'@waitvm MS\nbuffer_store_dword v5, v4, s[44:47], 0 offen sc1\nv_add_u32 v4, {F_M}, v{VL}')
        pm = Rc.take(); x_loads(Rc); xl = Rc.take()
        loop('l1c', 2, 'slab', None, sg0=6, extra={(0, 0): RP[3], (0, 1): RP[4], (0, 2): xl[:-3], (1, 1): xl[-3:-2], (1, 2): pm})
        warm(Rc); wm = Rc.take(); cut = [k + 1 for k, g in enumerate(wm) if g[-1].startswith('buffer')]
        fm = ['buffer_load_dwordx4 v[8:11], v4, s[44:47], 0 offen sc1']
        loop('l2a', 2, None, None, sg0=8, extra={(0, 0): wm[:cut[0]], (0, 2): wm[cut[0]:cut[1]], (0, 1): xl[-2:-1], (1, 0): wm[cut[1]:], (1, 1): xl[-1:], opt.get('fmp', (1, 2)): [fm]})
        Rc.atom(lambda: spin(Rc, fm, [8, 9, 10, 11], True, None))
        late_srds(Rc); mod_loads(Rc); md = Rc.take(); k3 = len(md) // 2
        UP = utf(Rc, False); d5 = dma5(0, 19, True)
        loop('l2', 2, None, None, sg0=10, extra={(0, 0): (md[:k3], 2, 12), (0, 1): (md[k3:], 0, 12), (0, 2): (d5[:2], 0, 5), (1, 0): (UP[0][:16] + d5b(d5[2:4]), 0, 12),
                                                 (1, 1): (d5[4:] + UP[0][16:], 0, 10), (1, 2): (UP[1], 0, 12), (1, 3): (UP[2], 2, 11)})
    else:
        loop('l1', 8, 'slab', 10)
        x_loads(); mod_loads(); warm()
        loop('l2', 4, None, (36, 8))
        K.e(f's_cmp_ge_u32 s2, 224\ns_cbranch_scc1 {name}_nout\n@save c')
        utf(K, True)
        K.e(f'{name}_nout:\n@restore c')
        if ST.only: ST('utf')
        if upto >= 5: K.e(flatten(dma5(0, 16, True)))
    K.e('s_lshl_b32 s57, s3, 12\ns_mov_b32 s16, 0')
    loop('l4', 4, 'wo', 19 if upto >= 5 else 12)
    ST('attn')
    K.e('s_lshl_b32 s16, s15, 15\ns_lshl_b32 s17, s13, 11\ns_add_u32 s16, s16, s17')
    for h in range(2):
        K.e(f'v_rcp_f32 v4, v{L[h]}\ns_nop 0\nv_mov_b32 v5, v4')
        for hh in range(2):
            o = O[h] + 8 * hh
            for j in range(0, 8, 2): K.e(f'v_pk_mul_f32 {v(o+j,2)}, {v(o+j,2)}, v[4:5]')
            for j in range(0, 8, 2): K.e(f'v_cvt_pk_bf16_f32 v{o+j//2}, v{o+j}, v{o+j+1}')
            K.e(f'buffer_store_dwordx4 {v(o,4)}, v{VO}, s[36:39], s16 offen offset:{1024*h+512*hh} sc1')
    if 'o' in opt.get('dbl', ''):
        for h in range(2):
            for hh in range(2): K.e(f'buffer_store_dwordx4 {v(O[h] + 8 * hh,4)}, v{VO}, s[36:39], s16 offen offset:{1024*h+512*hh}')
    K.e(f'v_lshl_add_u32 v{VA2}, v0, 4, s16')
    K.e(f's_mov_b32 s16, {f2h(2.0**60)}')
    K.e(f'v_cmp_nle_f32 vcc, v{L[0]}, s16\nv_cmp_nle_f32 s[18:19], v{L[1]}, s16\ns_or_b64 vcc, vcc, s[18:19]')
    K.e(f's_cmp_lg_u64 vcc, 0\ns_cselect_b32 s16, 1, 0\nv_mov_b32 v1, s16\ns_lshl_b32 s16, s3, 2\ns_add_u32 s16, s16, {FLAG}\nv_mov_b32 v2, s16')
    K.e('ds_write_b32 v2, v1')
    G4.srdB = 36
    G4.setup_b(0, 15, 1, 2)
    srd(K, 28, 8, WS_FLAG, F_SIZE)
    K.e(f'v_mov_b32 v2, {FLAG}')
    K.e('@waitall\ns_barrier')
    K.e('ds_read_b128 v[4:7], v2')
    K.e('v_or3_b32 v4, v4, v5, v6\nv_or_b32 v4, v4, v7\nv_readfirstlane_b32 s16, v4')
    K.e(f's_cmp_gt_u32 s16, s12\ns_cbranch_scc1 {name}_fb')
    publish(K, 28, VFA, VFT, 2)
    ST('pubO')
    K.e('s_mov_b32 s42, 32768')
    for j in range(16 if f1 else 48): K.e(f'v_accvgpr_read_b32 v{VX+j}, a{AP+j}')
    for j in range(16 if f1 else 0): K.e(f'v_accvgpr_read_b32 v{VG+2*j}, a{AP+16+j}'); K.e(unpack(VG + 2 * j, VG + 2 * j)[::-1])
    poll(K, 28, VFP, VFT, 16, opt.get('sleep', 0), opt.get('one', 2), ST)
    ST('gotO')
    G4.issue_b(G4.R)
    side = {}
    if upto >= 5:
        d = dma5(1, 16, True) + dma5(2, 16)
        side[15] = ['s_barrier']
        for k, g in enumerate(d): side[17 + k // 2] = side.get(17 + k // 2, []) + [g]
    G4.main(side, bper=opt.get('bper', 3), start_barrier=False)
    ST('k4')
    T = 100; S_ = 108; PK = 116
    srd(K, 44, 8, WS_X1S, 0x400000)
    srd(K, 48, 8, WS_STATS, 128 * 16 * 128)
    if upto < 6: srd(K, 36, 8, WS_X1, 0x400000)
    for nt in range(2):
        for aa in range(2):
            X = VX + 8 * nt + 4 * aa; PP = PK + 4 * aa
            K.e(f'v_permlane16_swap_b32 v{X}, v{X+2}\nv_permlane16_swap_b32 v{X+1}, v{X+3}')
            for e in range(2):
                mt = 2 * aa + e; A0 = G4.acc(mt, nt)
                K.e(unpack(T, X + 2 * e) + unpack(T + 2, X + 2 * e + 1))
                for j in (0, 2): K.e(f'v_pk_fma_f32 {v(A0+j,2)}, {v(A0+j,2)}, {v(VG+4*mt+j,2)}, {v(T+j,2)}')
                for j in (0, 2): K.e(f'v_pk_mul_f32 {v(T+j,2)}, {v(A0+j,2)}, {v(VC+4*mt+j,2)}')
                K.e(f'v_cvt_pk_bf16_f32 v{PP+2*e}, v{T}, v{T+1}\nv_cvt_pk_bf16_f32 v{PP+2*e+1}, v{T+2}, v{T+3}')
            K.e(f'buffer_store_dwordx4 {v(PP,4)}, v{VA2}, s[44:47], {"s42" if nt else "0"} offen offset:{1024*aa}{sc}')
            if 'x' in opt.get('dbl', ''): K.e(f'buffer_store_dwordx4 {v(PP,4)}, v{VA2}, s[44:47], {"s42" if nt else "0"} offen offset:{1024*aa}')
    for nt in range(2):
        for mt in range(4):
            A0 = G4.acc(mt, nt)
            for j in (0, 2):
                if mt == 0 and j == 0:
                    K.e(f'v_pk_add_f32 {v(S_+4*nt,2)}, {v(A0,2)}, {v(A0+2,2)}\nv_pk_mul_f32 {v(S_+4*nt+2,2)}, {v(A0,2)}, {v(A0,2)}')
                    continue
                if mt: K.e(f'v_pk_add_f32 {v(S_+4*nt,2)}, {v(S_+4*nt,2)}, {v(A0+j,2)}')
                K.e(f'v_pk_fma_f32 {v(S_+4*nt+2,2)}, {v(A0+j,2)}, {v(A0+j,2)}, {v(S_+4*nt+2,2)}')
    for nt in range(2):
        K.e(f'v_add_f32 v{S_+4*nt}, v{S_+4*nt}, v{S_+4*nt+1}\nv_add_f32 v{S_+4*nt+1}, v{S_+4*nt+2}, v{S_+4*nt+3}')
    K.e(f'v_permlane32_swap_b32 v{S_}, v{S_+4}\nv_permlane32_swap_b32 v{S_+1}, v{S_+5}')
    K.e(f'v_add_f32 v{S_}, v{S_}, v{S_+4}\nv_add_f32 v{S_+1}, v{S_+1}, v{S_+5}')
    K.e(f'v_mov_b32 v{S_+2}, v{S_}\nv_mov_b32 v{S_+3}, v{S_+1}')
    K.e(f'v_permlane16_swap_b32 v{S_}, v{S_+2}\nv_permlane16_swap_b32 v{S_+1}, v{S_+3}')
    K.e(f'v_add_f32 v{S_}, v{S_}, v{S_+2}\nv_add_f32 v{S_+1}, v{S_+1}, v{S_+3}')
    K.e('v_and_b32 v1, 15, v0\nv_lshlrev_b32 v1, 3, v1\nv_lshrrev_b32 v2, 5, v0\nv_lshl_add_u32 v1, v2, 11, v1')
    K.e('v_bfe_u32 v2, v0, 4, 1\nv_lshl_add_u32 v1, v2, 30, v1')
    K.e('s_lshl_b32 s18, s15, 11\ns_lshl_b32 s19, s13, 7\ns_add_u32 s18, s18, s19')
    K.e(f'buffer_store_dwordx2 {v(S_,2)}, v1, s[48:51], s18 offen{sc}')
    for nt in range(2):
        for aa in range(2):
            X = VX + 8 * nt + 4 * aa
            for e in range(2):
                A0 = G4.acc(2 * aa + e, nt)
                K.e(f'v_cvt_pk_bf16_f32 v{X+2*e}, v{A0}, v{A0+1}\nv_cvt_pk_bf16_f32 v{X+2*e+1}, v{A0+2}, v{A0+3}')
            if upto < 6: K.e(f'buffer_store_dwordx4 {v(X,4)}, v{VA2}, s[36:39], {"s42" if nt else "0"} offen offset:{1024*aa}')
            else:
                for j in range(4): K.e(f'v_accvgpr_write_b32 a{AX1 + 8*nt + 4*aa + j}, v{X+j}')
    if upto >= 5:
        from mega5 import phase5
        phase5(K, ST, opt, VFA, VFP, VFT)
    if ST.on: K.e('@waitall'); ST('end'); ST.dump(8)
    K.e('s_endpgm')
    K.e(f'{name}_fb:\n@clear\n@hzreset\ns_waitcnt vmcnt(0) lgkmcnt(0)')
    srd(K, 28, 8, WS_KV, 0x40000)
    K.e('s_mov_b32 s12, 1\ns_mov_b32 s18, 0\nv_mov_b32 v1, 0xff800000\nv_mov_b32 v2, 0xff800000')
    K.e(f'@save fb\n@loophead fb\n{name}_fbl:')
    for b in range(2): K.e(f'buffer_load_dwordx4 {fr(F[1]+8+4*b,4)}, v{VL}, s[28:31], s18 offen offset:{1024*b}{kvf}')
    K.e([a0[0], b0[0], a0[1], b0[1]])
    for h in range(2): K.e(rowmax(h, 1 + h, False))
    K.e(f's_add_u32 s18, s18, 4096\ns_cmp_lt_u32 s18, 0x40000\ns_cbranch_scc1 {name}_fbl\n@check fb\n@loopend fb')
    for h in range(2): bcast(h, 1 + h, 0.0)
    K.e(flatten(ring_pro()))
    K.e(f'@waitall\ns_nop 1\ns_branch {name}_att')
    finish(K)
    K.align = 'all'
    return K, (name, 256, 256, 163840 if f1 else FLAG + 16)
```

```python
import sys
from mk import onefile
from k1 import build_k1
from k2 import build_k2
from k3 import build_k3
from k46 import build_k46
from k5 import build_k5
from k46n import build_k46n
from common import NAME
def full(path, o=None):
    o = o or {}
    def op(i, **kw):
        d = dict(kw); d.update(o.get(f'k{i}', {}))
        if o.get('stamp'): d.update(stamp=1, kidx=i - 1)
        return d
    parts = [build_k1(opt=op(1)), build_k2(opt=op(2)), build_k3(opt=op(3, un=2, perm='lead')),
             build_k46(4, opt=op(4, perm='lead')), build_k5(NS=4, R=6, opt=op(5)), build_k46(6, opt=op(6, perm='lead'))]
    if o.get('n32'): parts[3:] = [build_k46n(4, opt=op(4)), build_k5(NS=4, R=6, opt=op(5, om=1)), build_k46n(6, opt=op(6))]
    if o.get('mega'):
        from mega import build_mega
        up = o['mega']; mo = dict(upto=up); mo.update(o.get('m', {}))
        if o.get('stamp'): mo.update(stamp=o['stamp'], kidx=2)
        parts[2:up] = [build_mega(opt=mo)]
        if mo.get('f1'): parts = parts[2:]
        return onefile(path, parts)
    for i, pt in enumerate(parts): pt[0].stsuffix = o.get('st', {}).get(i + 1, '')
    for i, pt in enumerate(parts): pt[0].align = o.get('al', {3: 'all'}).get(i + 1, o.get('align'))
    return onefile(path, parts)
BEST = dict(f1=1, ct=1, xfirst=1, n1=0, dpo=(3, 7, 11), dpe=(3, 7, 11), n2=24, n3=24, ns=24, n4=24, nw=36, n5=42, XD=5)
if __name__ == '__main__':
    t = full(sys.argv[1] if len(sys.argv) > 1 else 'cdna_kernels/' + NAME + '.s', dict(mega=6, m=BEST))
    print(len(t))
```
